```python
import torch

def _softmax(x, axis=-1):
    return torch.softmax(x, dim=axis)
def _gelu(x):
    return torch.nn.functional.gelu(x, approximate="tanh")
def _silu(x):
    return torch.nn.functional.silu(x)
def _sigmoid(x):
    return torch.sigmoid(x)
def _layernorm(x, axis=-1, eps=1e-5):
    m = x.mean(dim=axis, keepdim=True)
    v = x.var(dim=axis, keepdim=True, unbiased=False)
    return (x - m) / torch.sqrt(v + eps)
def _scatter_add(tgt, idx, src, axis=0):
    return tgt.clone().index_add_(axis, idx, src)
def _segment_sum(src, seg, n):
    out = torch.zeros((n,) + src.shape[1:], dtype=src.dtype)
    return out.index_add_(0, seg, src)
def _pad(x, pw):
    flat = tuple(v for pair in reversed(pw) for v in pair)
    return torch.nn.functional.pad(x, flat)

kernel_name = 'gated_mix__ssm_conv_s4d__dense_activation_squared_relu__prompt'

def setup_inputs():

    _w = (lambda a: (lambda t: t.to(torch.bfloat16) if t.is_floating_point() else t)(torch.as_tensor(a)))
    def _A_setup():
        Bsz, L, D, N = 1, 2048, 640, 128
        return {
            "u": _w((lambda *s: torch.randn(*s, dtype=torch.bfloat16) * 0.05)(Bsz, L, D)),
            "log_A_real": _w((lambda *s: torch.randn(*s, dtype=torch.bfloat16) * 6.4)(D, N) * 0.5),
            "A_imag": _w((lambda *s: torch.randn(*s, dtype=torch.bfloat16) * 0.1)(D, N) * 3.14),
            "C_real": _w((lambda *s: torch.randn(*s, dtype=torch.bfloat16) * 0.4)(D, N) / N ** 0.5),
            "C_imag": _w((lambda *s: torch.randn(*s, dtype=torch.bfloat16) * 0.4)(D, N) / N ** 0.5),
            "log_dt": _w((lambda *s: torch.randn(*s, dtype=torch.bfloat16) * 0.1)(D) * 0.5 - 4.0),
            "D_skip": _w((lambda *s: torch.randn(*s, dtype=torch.bfloat16) * 0.1)(D)),
        }
    _A_in = _A_setup()

    def _B_setup():
        B, S, D, F = 1, 2048, 640, 1728
        return {
            "x": _w((lambda *s: torch.randn(*s, dtype=torch.bfloat16) * 0.05)(B, S, D)),
            "w1": _w((lambda *s: torch.randn(*s, dtype=torch.bfloat16) * 0.05)(D, F)),
            "b1": _w((lambda *s: torch.randn(*s, dtype=torch.bfloat16) * 0.05)(F)),
            "w2": _w((lambda *s: torch.randn(*s, dtype=torch.bfloat16) * 0.05)(F, D)),
            "b2": _w((lambda *s: torch.randn(*s, dtype=torch.bfloat16) * 0.05)(D)),
        }
    _B_in = _B_setup()

    return {
        "A_u": _A_in["u"],
        "A_log_A_real": _A_in["log_A_real"],
        "A_A_imag": _A_in["A_imag"],
        "A_C_real": _A_in["C_real"],
        "A_C_imag": _A_in["C_imag"],
        "A_log_dt": _A_in["log_dt"],
        "A_D_skip": _A_in["D_skip"],
        "B_x": _B_in["x"],
        "B_w1": _B_in["w1"],
        "B_b1": _B_in["b1"],
        "B_w2": _B_in["w2"],
        "B_b2": _B_in["b2"],
        "gate_w": _w((lambda *s: torch.randn(*s, dtype=torch.bfloat16) * 0.05)(640) * 16.0),
    }

def reference(A_u, A_log_A_real, A_A_imag, A_C_real, A_C_imag, A_log_dt, A_D_skip, B_x, B_w1, B_b1, B_w2, B_b2, gate_w):
    def _A_ref(u, log_A_real, A_imag, C_real, C_imag, log_dt, D_skip):
        L = u.shape[1]
        dt = torch.exp(log_dt)
        A = -torch.exp(log_A_real) + 1j * A_imag
        C = (C_real + 1j * C_imag) * dt[:, None]
        pos = (lambda x, dt: x.to(dt))(torch.arange(L), log_dt.dtype)
        P = torch.exp((A * dt[:, None])[:, :, None] * pos[None, None, :])
        K = 2.0 * torch.einsum("dn,dnl->dl", C, P).real
        L2 = 2 * L
        u_t = (lambda x, *d: x.permute(*d))(u, 0, 2, 1)
        Kf = (lambda x, *a, **k: torch.fft.rfft(x.float(), *a, **k))(K, L2)
        Uf = (lambda x, *a, **k: torch.fft.rfft(x.float(), *a, **k))(u_t, L2)
        y = (lambda x, *a, **k: torch.fft.irfft(x, *a, **k).to(torch.bfloat16))(Uf * Kf[None, :, :], L2)[:, :, :L]
        y = (lambda x, *d: x.permute(*d))(y, 0, 2, 1)
        return y + u * D_skip[None, None, :]

    def _B_ref(x, w1, b1, w2, b2):
        h = torch.einsum("bsd,df->bsf", x, w1) + b1
        zero = torch.zeros_like(h)
        r = torch.where(h > zero, h, zero)
        h = r * r
        out = torch.einsum("bsf,fd->bsd", h, w2) + b2
        return out

    x = A_u
    g = _sigmoid((x * gate_w).sum(-1, keepdims=True))
    a = _A_ref(x, A_log_A_real, A_A_imag, A_C_real, A_C_imag, A_log_dt, A_D_skip)
    b = _B_ref(x, B_w1, B_b1, B_w2, B_b2)
    return g * a + (1 - g) * b
```

```python
from emit import Asm, v, s

HP_OFF  = 0x0000000; HP_SZ  = 32*54*4096
W2P_OFF = 0x0700000; W2P_SZ = 8*54*5120
UT_OFF  = 0x0A00000; UT_SZ  = 640*4096
KD_OFF  = 0x0D00000; KD_SZ  = 640*3072
CF_OFF  = 0x0F00000; CF_SZ  = 8*1024
G_OFF   = 0x0F10000; G_SZ   = 2048*4
FL_OFF  = 0x0F20000; FL_SZ  = 160*128
AT_OFF  = 0x1000000; AT_SZ  = 640*4096

P_U=16; P_LAR=18; P_AIM=20; P_CR=22; P_CI=24; P_LDT=26; P_DSK=28; P_BX=30
P_W1=32; P_B1=34; P_W2=36; P_B2=38; P_GATE=40; P_OUT=42; P_DBG=44; P_WS=46

def load_ptrs(a):
    a.i("s_load_dwordx16 s[16:31], s[0:1], 0")
    a.i("s_load_dwordx16 s[32:47], s[0:1], 64")

def srd(a, d, p, off, size):
    if off:
        a.i(f"s_add_u32 s{d}, s{p}, {off:#x}")
        a.i(f"s_addc_u32 s{d+1}, s{p+1}, 0")
    else:
        a.i(f"s_mov_b32 s{d}, s{p}")
        a.i(f"s_mov_b32 s{d+1}, s{p+1}")
    a.i(f"s_mov_b32 s{d+2}, {size:#x}")
    a.i(f"s_mov_b32 s{d+3}, 0x20000")

class VM:
    def __init__(self, a): self.a = a; self.n = 0; self.tags = {}
    def issue(self, text, tag=None):
        self.a.i(text); self.n += 1
        if tag is not None: self.tags[tag] = self.n
    def wait(self, tag):
        k = self.n - self.tags[tag]
        assert k <= 63, k
        self.a.i(f"s_waitcnt vmcnt({k})")
    def wait_all(self):
        self.a.i("s_waitcnt vmcnt(0)")

def kernel_header(name):
    return f""".globl {name}
.p2align 8
.type {name},@function
{name}:
"""
def kernel_desc(name, vgpr=256, sgpr=102):
    return f""".p2align 6
.amdhsa_kernel {name}
  .amdhsa_next_free_vgpr {vgpr}
  .amdhsa_next_free_sgpr {sgpr}
  .amdhsa_accum_offset {min(256,(vgpr+3)//4*4)}
  .amdhsa_group_segment_fixed_size 0
  .amdhsa_kernarg_size 128
  .amdhsa_user_sgpr_count 2
  .amdhsa_user_sgpr_kernarg_segment_ptr 1
  .amdhsa_system_sgpr_workgroup_id_x 1
.end_amdhsa_kernel
"""

STAMP_OFF = 0x2000000
class Stamps:
    def __init__(self, a, enable, base=72):
        self.a = a; self.en = enable; self.n = 0; self.base = base
    def stamp(self):
        if not self.en: return
        a = self.a
        a.i(f"s_memtime s[{self.base+2*self.n}:{self.base+2*self.n+1}]")
        a.i("s_waitcnt lgkmcnt(0)")
        self.n += 1
    def real(self):
        if not self.en: return
        a = self.a
        a.i(f"s_memrealtime s[{self.base+2*self.n}:{self.base+2*self.n+1}]")
        a.i("s_waitcnt lgkmcnt(0)")
        self.n += 1
    def write(self, kidx, vt=1, srd=96):
        if not self.en: return
        a = self.a
        a.i(f"s_add_u32 s{srd}, s{P_WS}, {STAMP_OFF + kidx*0x100000:#x}")
        a.i(f"s_addc_u32 s{srd+1}, s{P_WS+1}, 0")
        a.i(f"s_mov_b32 s{srd+2}, 0x100000")
        a.i(f"s_mov_b32 s{srd+3}, 0x20000")
        a.i(f"v_lshrrev_b32 v{vt}, 6, v0")
        a.i(f"v_lshlrev_b32 v{vt}, 6, v{vt}")
        a.i(f"s_lshl_b32 s3, s2, 9")
        a.i(f"v_add_u32 v{vt}, s3, v{vt}")
        a.i(f"v_and_b32 v{vt+1}, 63, v0")
        a.i(f"v_cmp_eq_u32 vcc, 0, v{vt+1}")
        a.i(f"s_and_saveexec_b64 s[6:7], vcc")
        for i in range(self.n):
            a.i(f"v_mov_b32 v{vt+1}, s{self.base+2*i}")
            a.i(f"buffer_store_dword v{vt+1}, v{vt}, s[{srd}:{srd+3}], 0 offen offset:{4*i}")
            a.i("s_nop 1")
        a.i("s_mov_b64 exec, s[6:7]")
```

```python
import re

TRANS = ("v_exp_f32","v_log_f32","v_rcp_f32","v_rsq_f32","v_sqrt_f32","v_sin_f32","v_cos_f32","v_rcp_iflag_f32")
REG = re.compile(r"^(v|s|a)(\d+)$|^(v|s|a)\[(\d+):(\d+)\]$")

def regs(op):
    op = op.strip()
    neg = op.startswith("-")
    if neg: op = op[1:]
    if op.startswith("abs(") or op.startswith("|"):
        op = op.replace("abs(", "").replace(")", "").replace("|", "")
    if op == "vcc": return {("s","vcc")}
    if op == "exec": return {("s","exec")}
    if op == "m0": return {("s","m0")}
    if op == "scc": return set()
    m = REG.match(op)
    if not m: return set()
    if m.group(1): return {(m.group(1), int(m.group(2)))}
    return {(m.group(3), i) for i in range(int(m.group(4)), int(m.group(5))+1)}

class Rec:
    __slots__ = ("kind","w","r","t","mn","srcC","passes","storedata")

class Asm:
    def __init__(self):
        self.out = []
        self.t = 0
        self.rec = []
        self.nlabel = 0
        self.count = {}
    def c(self, s):
        self.out.append("; " + s)
    def raw(self, s):
        self.out.append(s)
    def newlabel(self, base="L"):
        self.nlabel += 1
        return f"{base}_{self.nlabel}"
    def label(self, name):
        self.out.append(f"{name}:")
    def nop(self, n):
        while n > 0:
            k = min(n, 16)
            self.out.append(f"s_nop {k-1}")
            self.t += k
            n -= k
    def flush(self, n=None):
        need = 0
        for r in self.rec:
            d = self.t - r.t
            if r.kind == "mfma": need = max(need, (8 if r.passes == 4 else 12) - d)
            elif r.kind in ("valu","trans"): need = max(need, 5 - d if any(k=="s" for k,_ in r.w) else 2 - d)
            elif r.kind == "salu" and ("s","m0") in r.w: need = max(need, 1 - d)
            elif r.storedata: need = max(need, 2 - d)
        if need > 0: self.nop(need)
    def split_ops(self, rest):
        ops = []; cur = ""; depth = 0
        for ch in rest:
            if ch == "[": depth += 1
            if ch == "]": depth -= 1
            if ch == "," and depth == 0:
                ops.append(cur.strip()); cur = ""
            else: cur += ch
        if cur.strip(): ops.append(cur.strip())
        return ops
    def i(self, text):
        text = text.strip()
        parts = text.split(None, 1)
        mn = parts[0]
        rest = parts[1] if len(parts) > 1 else ""
        ops = self.split_ops(rest)
        mods = ""
        if ops:
            last = ops[-1].split(None, 1)
            if len(last) > 1 and not last[0].endswith(":"):
                ops[-1] = last[0]; mods = last[1]
        w = set(); r = set(); kind = "other"; srcC = set(); passes = 0; storedata = set()
        base = mn.replace("_e32","").replace("_e64","").replace("_dpp","").replace("_sdwa","")
        if mn.startswith("v_mfma"):
            kind = "mfma"
            w = regs(ops[0]); r = regs(ops[1]) | regs(ops[2]) | regs(ops[3]); srcC = regs(ops[3])
            passes = 8 if "32x32" in mn else 4
        elif mn.startswith("v_"):
            kind = "trans" if base in TRANS else "valu"
            if base.startswith("v_cmp"):
                w = regs(ops[0]);
                for o in ops[1:]: r |= regs(o)
                if base.startswith("v_cmpx"): w |= {("s","exec")}
            elif "swap" in base:
                w = regs(ops[0]) | regs(ops[1]); r = set(w)
            elif base in ("v_add_co_u32","v_sub_co_u32","v_addc_co_u32","v_subb_co_u32","v_mad_u64_u32"):
                w = regs(ops[0]) | regs(ops[1])
                for o in ops[2:]: r |= regs(o)
            else:
                w = regs(ops[0])
                for o in ops[1:]: r |= regs(o)
                if base in ("v_fmac_f32","v_pk_fmac_f16","v_dot2c_f32_bf16","v_writelane_b32") or "d16" in mods: r |= w
                if base == "v_cndmask_b32" and len(ops) == 3: r |= {("s","vcc")}
                if "_dpp" in mn or "row_" in mods or "quad_perm" in mods: kind = kind
        elif mn.startswith("buffer_") or mn.startswith("global_"):
            kind = "vmem"
            if mn.startswith("buffer_inv") or mn.startswith("buffer_wbl2"):
                pass
            elif "load" in mn:
                if "lds" in mods.split() or "_lds_" in mn:
                    for o in ops: r |= regs(o)
                    r |= {("s","m0")}
                else:
                    w = regs(ops[0])
                    for o in ops[1:]: r |= regs(o)
            elif "store" in mn:
                for o in ops: r |= regs(o)
                if mn.startswith("buffer_"): d = regs(ops[0])
                else: d = regs(ops[1])
                if "x3" in mn or "x4" in mn: storedata = d
            elif "atomic" in mn:
                for o in ops: r |= regs(o)
                if "sc0" in mods.split(): w = regs(ops[0])
        elif mn.startswith("ds_"):
            kind = "ds"
            if mn.startswith("ds_read") or mn.startswith("ds_bpermute") or mn.startswith("ds_swizzle") or mn.startswith("ds_permute"):
                w = regs(ops[0])
                for o in ops[1:]: r |= regs(o)
                if "d16" in mn: r |= w
            else:
                for o in ops: r |= regs(o)
        elif mn.startswith("s_"):
            kind = "salu"
            if mn in ("s_waitcnt","s_barrier","s_nop","s_endpgm","s_sleep","s_setprio","s_branch") or mn.startswith("s_cbranch"):
                kind = "ctl"
            elif mn.startswith("s_cmp") or mn.startswith("s_bitcmp"):
                for o in ops: r |= regs(o)
            elif mn.startswith("s_load") or mn.startswith("s_memtime") or mn.startswith("s_memrealtime") or mn.startswith("s_buffer_load"):
                kind = "smem"; w = regs(ops[0])
                for o in ops[1:]: r |= regs(o)
            else:
                w = regs(ops[0])
                for o in ops[1:]: r |= regs(o)
                if "saveexec" in mn: w |= {("s","exec")}
        need = 0
        isdpp = ("_dpp" in mn) or ("row_" in mods) or ("quad_perm" in mods) or ("row_" in rest)
        vr = {x for x in r if x[0] in "va"}; vw = {x for x in w if x[0] in "va"}
        sr = {x for x in r if x[0] == "s"}
        for p in self.rec:
            d = self.t - p.t
            if d >= 20: continue
            pvw = {x for x in p.w if x[0] in "va"}; psw = {x for x in p.w if x[0] == "s"}
            if p.kind in ("valu","trans"):
                if kind == "mfma" and (pvw & vr): need = max(need, 2 - d)
                if kind in ("valu","trans") and (psw & sr) :
                    if base in ("v_readlane_b32","v_writelane_b32"): need = max(need, 4 - d)
                    else: need = max(need, 2 - d)
                if kind == "vmem" and (psw & sr): need = max(need, 5 - d)
                if kind == "salu" and (psw & sr): need = max(need, 1 - d)
                if kind == "ctl" and (("s","vcc") in psw) and ("vcc" in mn): need = max(need, 5 - d)
                if base in ("v_readlane_b32","v_readfirstlane_b32") and (pvw & vr): need = max(need, 1 - d)
                if isdpp and (pvw & vr): need = max(need, 2 - d)
                if "permlane" in base and (pvw & vr): need = max(need, 2 - d)
                if p.kind == "trans" and kind in ("valu","mfma","trans") and (pvw & vr): need = max(need, 1 - d)
                if ("s","exec") in psw and kind in ("mfma",): need = max(need, 4 - d)
                if ("s","exec") in psw and isdpp: need = max(need, 5 - d)
            if p.kind == "mfma":
                n1 = 8 if p.passes == 4 else 12
                n2 = 6 if p.passes == 4 else 10
                n3 = 3 if p.passes == 4 else 7
                if kind == "mfma":
                    ab = regs(ops[1]) | regs(ops[2])
                    if pvw & ab: need = max(need, n1 - d)
                    if (pvw & srcC) and not (pvw == srcC and passes == p.passes): need = max(need, n2 - d)
                    if (pvw & vw) and not (pvw == vw and pvw == srcC):
                        if not (pvw & srcC): need = max(need, n2 - d)
                elif kind in ("valu","trans","vmem","ds"):
                    if pvw & (vr | vw): need = max(need, n1 - d)
                    if kind in ("valu","trans") and (p.srcC & vw): need = max(need, n3 - d)
            if p.storedata and (p.storedata & vw):
                need = max(need, (2 if kind in ("valu","trans") else 1) - d)
            if p.kind == "salu" and ("s","m0") in p.w and ("s","m0") in r and kind in ("vmem","ds"): need = max(need, 1 - d)
        if need > 0: self.nop(need)
        self.out.append(text)
        self.t += 1
        if mn == "s_nop": self.t += int(ops[0], 0)
        rec = Rec(); rec.kind = kind; rec.w = w; rec.r = r; rec.t = self.t; rec.mn = mn; rec.srcC = srcC; rec.passes = passes; rec.storedata = storedata
        self.rec.append(rec)
        if len(self.rec) > 40: self.rec.pop(0)
        self.count[kind] = self.count.get(kind, 0) + 1
    def text(self):
        return "\n".join(self.out) + "\n"

def v(i, n=1):
    return f"v{i}" if n == 1 else f"v[{i}:{i+n-1}]"
def s(i, n=1):
    return f"s{i}" if n == 1 else f"s[{i}:{i+n-1}]"
```

```python
from common import *

def gen_g1(a, st_en=False, opts=()):
    a.c("==== G1 role ====")
    S = Stamps(a, st_en)
    S.real(); S.stamp()
    a.i("s_and_b32 s4, s2, 7")
    a.i("s_lshr_b32 s5, s2, 3")
    a.i("s_mul_i32 s6, s5, 37")
    a.i("s_lshr_b32 s6, s6, 8")
    a.i("s_mul_i32 s7, s6, 7")
    a.i("s_sub_u32 s5, s5, s7")
    a.i("s_add_u32 s3, s5, s6")
    a.i("s_and_b32 s7, s4, 1")
    a.i("s_mul_i32 s7, s7, 7")
    a.i("s_add_u32 s5, s5, s7")
    a.i("s_lshr_b32 s4, s4, 1")
    a.i("s_lshl_b32 s4, s4, 2")
    a.i("s_add_u32 s4, s4, s6")
    a.i("v_lshrrev_b32 v1, 6, v0")
    a.i("v_and_b32 v2, 63, v0")
    a.i("v_readfirstlane_b32 s8, v1")
    a.i("v_and_b32 v3, 15, v2")
    a.i("v_lshrrev_b32 v4, 4, v2")
    a.i("s_waitcnt lgkmcnt(0)")
    SX, SW, SB, SH = 48, 52, 56, 60
    XB = 0; WB = 81920; NX = 5; NW = 10
    NST = 20
    lcomp = a.newlabel("G1C")
    a.i("s_cmp_lt_u32 s8, 4")
    a.i(f"s_cbranch_scc1 {lcomp}")
    a.c("G1 loader")
    srd(a, SX, P_U, 0, 2048*1280)
    srd(a, SW, P_W1, 0, 640*3456)
    a.i("s_sub_u32 s8, s8, 4")
    VXD, VXD1, VWD = 10, 11, 12
    a.i("v_lshrrev_b32 v5, 3, v2")
    a.i("v_and_b32 v6, 7, v2")
    a.i("v_xor_b32 v6, v6, v4")
    a.i("s_lshl_b32 s9, s4, 7")
    a.i("s_lshl_b32 s10, s8, 5")
    a.i("s_add_u32 s9, s9, s10")
    a.i("v_add_u32 v5, s9, v5")
    a.i("v_mul_u32_u24 v5, 1280, v5")
    a.i(f"v_lshl_add_u32 v{VXD}, v6, 4, v5")
    a.i("v_xor_b32 v6, 4, v6")
    a.i(f"v_lshl_add_u32 v{VXD1}, v6, 4, v5")
    a.i("v_bfe_u32 v5, v2, 2, 2")
    a.i("s_lshl_b32 s10, s8, 3")
    a.i("v_add_u32 v5, s10, v5")
    a.i("v_mul_u32_u24 v5, 3456, v5")
    a.i("s_lshl_b32 s11, s5, 8")
    a.i("v_add_u32 v5, s11, v5")
    a.i("v_and_b32 v6, 3, v2")
    a.i("s_and_b32 s10, s8, 1")
    a.i("s_lshl_b32 s10, s10, 1")
    a.i("v_xor_b32 v6, s10, v6")
    a.i("v_lshl_add_u32 v6, v4, 2, v6")
    a.i(f"v_lshl_add_u32 v{VWD}, v6, 4, v5")
    a.i("s_lshl_b32 s12, s8, 11")
    a.i("s_lshl_b32 s17, s8, 12")
    vm = VM(a)
    def xdma(m, jj):
        a.i(f"s_add_u32 m0, s17, {XB + (m%NX)*16384 + jj*1024}")
        a.i(f"s_mov_b32 s13, {m*128 + jj*10240}")
        vm.issue(f"buffer_load_dwordx4 v{VXD if jj % 2 == 0 else VXD1}, s[{SX}:{SX+3}], s13 offen lds", ("x", m) if jj == 3 else None)
    def wdma(st, jj):
        a.i(f"s_add_u32 m0, s12, {WB + (st%NW)*8192 + jj*1024}")
        a.i(f"s_mov_b32 s13, {st*110592 + jj*13824}")
        vm.issue(f"buffer_load_dwordx4 v{VWD}, s[{SW}:{SW+3}], s13 offen lds", ("w", st) if jj == 1 else None)
    def pair(m):
        for jj in range(2): wdma(2*m, jj)
        for jj in range(4): xdma(m, jj)
        for jj in range(2): wdma(2*m+1, jj)
    def wait_stage(st):
        k = min(vm.n - vm.tags[("x", st >> 1)], vm.n - vm.tags[("w", st)])
        a.i(f"s_waitcnt vmcnt({k})")
    NPRO = 3
    if "pro5" in opts: NPRO = 5
    if "pro2" in opts: NPRO = 2
    a.i("s_sub_u32 s14, s3, s6")
    a.i("v_lshrrev_b32 v5, 1, v2")
    a.i("v_lshlrev_b32 v5, 2, v5")
    a.i("v_add_u32 v5, s6, v5")
    a.i("v_mul_u32_u24 v5, 3456, v5")
    a.i("v_and_b32 v6, 1, v2")
    a.i("v_lshl_add_u32 v5, v6, 7, v5")
    a.i("v_add_u32 v13, s11, v5")
    a.i("v_and_b32 v6, 31, v2")
    a.i("v_mul_u32_u24 v6, 7, v6")
    a.i("v_add_u32 v6, s14, v6")
    a.i("v_min_u32 v6, 127, v6")
    a.i("s_lshl_b32 s9, s4, 7")
    a.i("v_add_u32 v6, s9, v6")
    a.i("v_mul_u32_u24 v6, 1280, v6")
    a.i("v_lshrrev_b32 v7, 5, v2")
    a.i("v_lshl_add_u32 v14, v7, 7, v6")
    for m in range(NPRO):
        pair(m)
        if m == 1 and "nopf" not in opts:
            a.i("s_add_u32 s9, s8, 1")
            a.i("s_mul_i32 s10, s9, 442368")
            a.i("s_lshl_b32 s9, s9, 8")
            vm.issue(f"buffer_load_dword v20, v13, s[{SW}:{SW+3}], s10 offen")
            vm.issue(f"buffer_load_dword v21, v14, s[{SX}:{SX+3}], s9 offen")
    S.stamp()
    wait_stage(0)
    S.stamp()
    a.i("s_barrier")
    items = []
    for m in range(NPRO, 10):
        items += [("w", 2*m, 0), ("w", 2*m, 1), ("x", m, 0), ("x", m, 1), ("x", m, 2), ("x", m, 3), ("w", 2*m+1, 0), ("w", 2*m+1, 1)]
    def ok(it, st):
        if it[0] == "w": return it[1] - NW <= st
        return 2*(it[1] - NX) + 1 <= st
    for st in range(NST - 1):
        wait_stage(st + 1)
        if "nobar" not in opts or st < 10: a.i("s_barrier")
        cnt = 0
        while items and cnt < 4 and ok(items[0], st):
            it = items.pop(0); cnt += 1
            (wdma if it[0] == "w" else xdma)(it[1], it[2])
    assert not items
    S.stamp()
    S.real()
    S.write(0, vt=20)
    a.i("s_endpgm")
    a.label(lcomp)
    a.c("G1 compute")
    srd(a, SB, P_B1, 0, 3456)
    srd(a, SH, P_WS, HP_OFF, HP_SZ)
    VHP, VXR, VXR1, VWE, VWO = 13, 14, 17, 15, 16
    ACC = 24; FR = 88; BIAS = 152
    a.i("s_lshr_b32 s15, s8, 1")
    a.i("s_and_b32 s16, s8, 1")
    a.i("s_lshl_b32 s11, s5, 8")
    a.i("s_lshl_b32 s10, s15, 7")
    a.i("s_add_u32 s10, s10, s11")
    a.i("v_lshlrev_b32 v5, 3, v4")
    a.i("v_add_u32 v5, s10, v5")
    for ft in range(4):
        a.i(f"buffer_load_dwordx2 v[{FR+32+2*ft}:{FR+33+2*ft}], v5, s[{SB}:{SB+3}], 0 offen offset:{32*ft}")
    a.i("v_lshrrev_b32 v6, 1, v3")
    a.i("v_xor_b32 v6, v6, v4")
    a.i("s_lshl_b32 s10, s16, 6")
    a.i("v_add_u32 v5, s10, v3")
    a.i("v_lshlrev_b32 v5, 7, v5")
    a.i(f"v_lshl_add_u32 v{VXR}, v6, 4, v5")
    a.i("v_xor_b32 v6, 4, v6")
    a.i(f"v_lshl_add_u32 v{VXR1}, v6, 4, v5")
    a.i("v_bfe_u32 v5, v2, 2, 2")
    a.i("v_and_b32 v6, 3, v2")
    a.i("v_lshlrev_b32 v7, 11, v4")
    a.i("v_lshl_add_u32 v7, v5, 6, v7")
    a.i("v_lshl_add_u32 v7, v6, 3, v7")
    a.i("s_lshl_b32 s10, s15, 9")
    a.i(f"s_add_u32 s10, s10, {WB}")
    a.i("v_add_u32 v7, s10, v7")
    a.i("v_and_b32 v8, 1, v4")
    a.i(f"v_lshl_add_u32 v{VWE}, v8, 5, v7")
    a.i("v_xor_b32 v8, 1, v8")
    a.i(f"v_lshl_add_u32 v{VWO}, v8, 5, v7")
    a.i(f"v_lshlrev_b32 v{VHP}, 4, v2")
    VXRb, VXR1b, VWEb, VWOb = 18, 19, 22, 23
    a.i(f"v_add_u32 v{VXRb}, 49152, v{VXR}")
    a.i(f"v_add_u32 v{VXR1b}, 49152, v{VXR1}")
    a.i(f"v_add_u32 v{VWEb}, 49152, v{VWE}")
    a.i(f"v_add_u32 v{VWOb}, 49152, v{VWO}")
    a.i("s_waitcnt vmcnt(0)")
    for ft in range(4):
        for h in range(2):
            src = FR+32+2*ft+h
            a.i(f"v_lshlrev_b32 v{BIAS+4*ft+2*h}, 16, v{src}")
            a.i(f"v_and_b32 v{BIAS+4*ft+2*h+1}, 0xffff0000, v{src}")
    lgate = a.newlabel("G1G")
    a.i("s_lshl_b32 s10, s5, 1")
    a.i("s_add_u32 s10, s10, s15")
    a.i("s_cmp_eq_u32 s10, 27")
    a.i(f"s_cbranch_scc1 {lgate}")
    def read_ops(st):
        R = FR + (st % 2) * 32
        ops = []
        ws = st % NW; xs = (st >> 1) % NX
        for ft in range(4):
            if ws < 6: va = VWE if ft % 2 == 0 else VWO
            else: va = VWEb if ft % 2 == 0 else VWOb
            for e in range(2):
                ops.append(f"ds_read_b64_tr_b16 v[{R+16+4*ft+2*e}:{R+16+4*ft+2*e+1}], v{va} offset:{(ws % 6)*8192 + e*1024 + (ft>>1)*256}")
            if xs < 3: vx = VXR if st % 2 == 0 else VXR1
            else: vx = VXRb if st % 2 == 0 else VXR1b
            ops.append(f"ds_read_b128 v[{R+4*ft}:{R+4*ft+3}], v{vx} offset:{(xs % 3)*16384 + ft*2048}")
        return ops
    def mfma_ops(st):
        R = FR + (st % 2) * 32
        ops = []
        for ft in range(4):
            for lt in range(4):
                d = ACC + (ft*4+lt)*4
                C = f"v[{BIAS+4*ft}:{BIAS+4*ft+3}]" if st == 0 else f"v[{d}:{d+3}]"
                ops.append(f"v_mfma_f32_16x16x32_bf16 v[{d}:{d+3}], v[{R+16+4*ft}:{R+16+4*ft+3}], v[{R+4*lt}:{R+4*lt+3}], {C}")
        return ops
    S.n = 2
    S.stamp()
    a.i("s_barrier")
    S.stamp()
    for o in read_ops(0): a.i(o)
    for st in range(NST):
        if st + 1 < NST:
            a.i("s_waitcnt lgkmcnt(0)")
            if "nobar" not in opts or st < 10: a.i("s_barrier")
            if st in (1, 5, 11): S.stamp()
            rd = read_ops(st+1)
            if "noread" in opts: rd = []
            if "xonly" in opts: rd = [r for r in rd if "b128" in r]
            if "wonly" in opts: rd = [r for r in rd if "tr_b16" in r]
        else:
            a.i("s_waitcnt lgkmcnt(0)")
            rd = []
        mf = mfma_ops(st)
        for i, m in enumerate(mf):
            if "burst" not in opts:
                a.i(m)
                if rd: a.i(rd.pop(0))
            else:
                if rd: a.i(rd.pop(0))
                if rd: a.i(rd.pop(0))
                a.i(m)
    S.stamp()
    a.c("G1 epilogue")
    a.i("s_lshl_b32 s14, s4, 1")
    a.i("s_add_u32 s14, s14, s16")
    a.i("s_mul_i32 s14, s14, 54")
    a.i("s_lshl_b32 s10, s5, 2")
    a.i("s_add_u32 s14, s14, s10")
    a.i("s_lshl_b32 s10, s15, 1")
    a.i("s_add_u32 s14, s14, s10")
    a.i("s_lshl_b32 s14, s14, 12")
    a.flush()
    for p in range(2):
        for lt in range(4):
            T = FR + (p*4+lt)*4
            for h in range(2):
                d = ACC + ((2*p+h)*4+lt)*4
                for r in range(4): a.i(f"v_max_f32 v{d+r}, 0, v{d+r}")
                for r in range(0, 4, 2): a.i(f"v_pk_mul_f32 v[{d+r}:{d+r+1}], v[{d+r}:{d+r+1}], v[{d+r}:{d+r+1}]")
                a.i(f"v_cvt_pk_bf16_f32 v{T+2*h}, v{d}, v{d+1}")
                a.i(f"v_cvt_pk_bf16_f32 v{T+2*h+1}, v{d+2}, v{d+3}")
            a.i(f"buffer_store_dwordx4 v[{T}:{T+3}], v{VHP}, s[{SH}:{SH+3}], s14 offen offset:{lt*1024}")
        a.i("s_add_u32 s14, s14, 4096")
    S.stamp()
    if st_en: a.i("s_waitcnt vmcnt(0)")
    S.stamp(); S.real()
    S.write(0)
    a.i("s_endpgm")
    a.label(lgate)
    a.c("G1 gate path")
    SGW, SGO = 64, 68
    srd(a, SGW, P_GATE, 0, 1280)
    srd(a, SGO, P_WS, G_OFF, G_SZ)
    GF = 24; XF = 104; GA = 136
    a.i("v_lshlrev_b32 v5, 4, v4")
    for st in range(NST):
        a.i(f"buffer_load_dwordx4 v[{GF+4*st}:{GF+4*st+3}], v5, s[{SGW}:{SGW+3}], 0 offen offset:{64*st}")
    def xreads(st):
        R = XF + (st % 2)*16
        xs = (st >> 1) % NX
        if xs < 3: vx = VXR if st % 2 == 0 else VXR1
        else: vx = VXRb if st % 2 == 0 else VXR1b
        for lt in range(4): a.i(f"ds_read_b128 v[{R+4*lt}:{R+4*lt+3}], v{vx} offset:{(xs % 3)*16384 + lt*2048}")
    a.i("s_waitcnt vmcnt(0)")
    a.i("s_barrier")
    xreads(0)
    for st in range(NST):
        a.i("s_waitcnt lgkmcnt(0)")
        if st + 1 < NST:
            a.i("s_barrier")
            xreads(st + 1)
        R = XF + (st % 2)*16
        for lt in range(4):
            d = GA + 4*lt
            C = "0" if st == 0 else f"v[{d}:{d+3}]"
            a.i(f"v_mfma_f32_16x16x32_bf16 v[{d}:{d+3}], v[{GF+4*st}:{GF+4*st+3}], v[{R+4*lt}:{R+4*lt+3}], {C}")
    a.i("s_lshl_b32 s9, s4, 7")
    a.i("s_lshl_b32 s10, s16, 6")
    a.i("s_add_u32 s9, s9, s10")
    a.i("v_add_u32 v5, s9, v3")
    a.i("v_lshlrev_b32 v5, 2, v5")
    for lt in range(4):
        d = GA + 4*lt
        a.i(f"v_mul_f32 v{d}, 0xbfb8aa3b, v{d}")
        a.i(f"v_exp_f32 v{d}, v{d}")
        a.i(f"v_add_f32 v{d}, 1.0, v{d}")
        a.i(f"v_rcp_f32 v{d}, v{d}")
    a.i("v_cmp_gt_u32 vcc, 16, v2")
    a.i("s_and_saveexec_b64 s[6:7], vcc")
    for lt in range(4):
        a.i(f"buffer_store_dword v{GA+4*lt}, v5, s[{SGO}:{SGO+3}], 0 offen offset:{64*lt}")
    a.i("s_endpgm")
```

```python
from common import *

def gen_g2(a, use_a=False, st_en=False, opts=()):
    a.c("==== G2 role ====")
    S = Stamps(a, st_en)
    S.real(); S.stamp()
    a.i("s_and_b32 s4, s2, 7")
    a.i("s_lshr_b32 s5, s2, 3")
    a.i("s_lshr_b32 s6, s5, 2")
    a.i("s_and_b32 s5, s5, 3")
    a.i("s_and_b32 s7, s4, 1")
    a.i("s_lshl_b32 s7, s7, 2")
    a.i("s_add_u32 s5, s5, s7")
    a.i("s_lshr_b32 s4, s4, 1")
    a.i("s_lshl_b32 s4, s4, 3")
    a.i("s_add_u32 s4, s4, s6")
    a.i("v_lshrrev_b32 v1, 6, v0")
    a.i("v_and_b32 v2, 63, v0")
    a.i("v_readfirstlane_b32 s8, v1")
    a.i("v_lshlrev_b32 v10, 4, v2")
    a.i("v_add_u32 v11, 40960, v10")
    a.i("s_waitcnt lgkmcnt(0)")
    SH, SP, SO, SB2, SG = 48, 52, 56, 60, 64
    NSG = 14; NB = 4
    srd(a, SH, P_WS, HP_OFF, HP_SZ)
    srd(a, SP, P_WS, W2P_OFF, W2P_SZ)
    a.i("s_mul_i32 s11, s4, 221184")
    a.i("s_lshl_b32 s9, s8, 10")
    a.i("s_add_u32 s11, s11, s9")
    a.i("s_mul_i32 s12, s5, 276480")
    a.i("s_mul_i32 s9, s8, 5120")
    a.i("s_add_u32 s12, s12, s9")
    ACC = 16; HB = 40; WF = 104
    vm = VM(a)
    def load_ops(sg):
        k = sg % NB
        ops = []
        for j in range(5):
            def f(j=j):
                a.i(f"s_add_u32 m0, s9, {k*20480 + j*1024}")
                a.i(f"s_add_u32 s13, s12, {sg*20480 + j*1024}")
                vm.issue(f"buffer_load_dwordx4 v10, s[{SP}:{SP+3}], s13 offen lds", ("w", sg) if j == 4 else None)
            ops.append(f)
        for ks in range(4):
            if 4*sg + ks >= 54: continue
            def f(ks=ks):
                r = HB + k*16 + 4*ks
                a.i(f"s_add_u32 s13, s11, {(4*sg+ks)*4096}")
                vm.issue(f"buffer_load_dwordx4 v[{r}:{r+3}], v10, s[{SH}:{SH+3}], s13 offen", ("h", sg))
            ops.append(f)
        return ops
    for sg in range(2):
        for f in load_ops(sg): f()
    srd(a, SO, P_OUT, 0, 2048*1280)
    srd(a, SB2, P_B2, 0, 1280)
    srd(a, SG, P_WS, G_OFF, G_SZ)
    a.i("v_lshrrev_b32 v3, 4, v2")
    a.i("v_and_b32 v4, 15, v2")
    a.i("s_mul_i32 s14, s5, 160")
    a.i("v_lshlrev_b32 v5, 3, v3")
    a.i("v_add_u32 v5, s14, v5")
    B2R = 144
    for tt in range(5):
        vm.issue(f"buffer_load_dwordx2 v[{B2R+2*tt}:{B2R+2*tt+1}], v5, s[{SB2}:{SB2+3}], 0 offen offset:{32*tt}")
    a.i("s_lshl_b32 s15, s4, 6")
    a.i("s_lshl_b32 s14, s8, 4")
    a.i("s_add_u32 s15, s15, s14")
    a.i("v_add_u32 v6, s15, v4")
    a.i("v_lshlrev_b32 v7, 2, v6")
    vm.issue(f"buffer_load_dword v156, v7, s[{SG}:{SG+3}], 0 offen")
    a.i("v_mul_u32_u24 v6, 1280, v6")
    a.i("v_add_u32 v6, v6, v5")
    nxt = 2
    for sg in range(NSG):
        k = sg % NB
        nks = 4 if sg < 13 else 2
        vm.wait(("h", sg))
        a.i("s_barrier")
        if sg in (0, 1, 4, 8): S.stamp()
        ld = []
        while nxt <= min(sg - 1 + NB, NSG - 1) and len(ld) < 18:
            ld += load_ops(nxt); nxt += 1
        def rd(ks):
            for tt in range(5):
                r = WF + (ks % 2)*20 + 4*tt
                a.i(f"ds_read_b128 v[{r}:{r+3}], v{10 if k < 2 else 11} offset:{(k%2)*20480 + (ks*5+tt)*1024}")
        rd(0)
        if ld: ld.pop(0)()
        if ld: ld.pop(0)()
        rd(1)
        per = (len(ld) + nks*5 - 1)//(nks*5) if ld else 0
        for ks in range(nks):
            a.i(f"s_waitcnt lgkmcnt({5 if ks < nks-1 else 0})")
            for tt in range(5):
                d = ACC + tt*4
                r = WF + (ks % 2)*20 + 4*tt
                hr = HB + k*16 + 4*ks
                C = "0" if (sg, ks) == (0, 0) else f"v[{d}:{d+3}]"
                a.i(f"v_mfma_f32_16x16x32_bf16 v[{d}:{d+3}], v[{r}:{r+3}], v[{hr}:{hr+3}], {C}")
                for _ in range(per):
                    if ld: ld.pop(0)()
            if ks + 2 < nks: rd(ks + 2)
        while ld: ld.pop(0)()
    S.stamp()
    a.c("G2 epilogue")
    AR = HB
    if use_a:
        SDB, SAT = 68, 72
        if st_en: S.base = 76
        srd(a, SDB, P_DBG, 0, 256)
        srd(a, SAT, P_WS, AT_OFF, AT_SZ)
        a.i("s_lshl_b32 s13, s5, 5")
        a.i("v_mov_b32 v7, s13")
        lp = a.newlabel("G2POLL"); ld = a.newlabel("G2RDY")
        a.i("s_mov_b32 s14, 0")
        a.label(lp)
        a.i(f"buffer_load_dword v8, v7, s[{SDB}:{SDB+3}], 0 offen sc1")
        a.i("s_waitcnt vmcnt(0)")
        a.i("v_readfirstlane_b32 s13, v8")
        a.i("s_nop 3")
        a.i("s_cmp_ge_u32 s13, 80")
        a.i(f"s_cbranch_scc1 {ld}")
        a.i("s_add_u32 s14, s14, 1")
        a.i("s_cmp_ge_u32 s14, 8192")
        a.i(f"s_cbranch_scc1 {ld}")
        a.i("s_sleep 4")
        a.i(f"s_branch {lp}")
        a.label(ld)
        a.i("v_lshrrev_b32 v7, 3, v2")
        a.i("v_lshlrev_b32 v8, 12, v7")
        a.i("v_and_b32 v9, 7, v2")
        a.i("v_lshl_add_u32 v8, v9, 4, v8")
        a.i("s_mul_i32 s13, s5, 327680")
        a.i("s_lshl_b32 s14, s4, 7")
        a.i("s_add_u32 s13, s13, s14")
        a.i("s_lshl_b32 s14, s8, 15")
        a.i("s_add_u32 s13, s13, s14")
        ABASE = 61440
        a.i("v_mul_u32_u24 v7, 160, v7")
        a.i("v_lshl_add_u32 v7, v9, 4, v7")
        a.i("s_mul_i32 s14, s8, 1280")
        a.i(f"s_add_u32 s14, s14, {ABASE}")
        a.i("v_add_u32 v7, s14, v7")
        for kk in range(3):
            if kk == 2:
                lsk = a.newlabel("G2A")
                a.i("s_cmp_ge_u32 s8, 2")
                a.i(f"s_cbranch_scc1 {lsk}")
            a.i(f"buffer_load_dwordx4 v[{AR+4*kk}:{AR+4*kk+3}], v8, s[{SAT}:{SAT+3}], s13 offen sc1")
            a.i("s_add_u32 s13, s13, 131072")
            if kk == 2:
                a.i("s_waitcnt vmcnt(0)")
                a.i(f"ds_write_b128 v7, v[{AR+8}:{AR+11}] offset:{2*5120}")
                a.label(lsk)
        a.i("s_waitcnt vmcnt(0)")
        for kk in range(2): a.i(f"ds_write_b128 v7, v[{AR+4*kk}:{AR+4*kk+3}] offset:{kk*5120}")
        a.i("s_waitcnt lgkmcnt(0)")
        a.i("s_barrier")
        a.i("v_bfe_u32 v7, v2, 2, 2")
        a.i("v_lshl_add_u32 v7, v3, 2, v7")
        a.i("v_mul_u32_u24 v7, 160, v7")
        a.i("v_and_b32 v8, 3, v2")
        a.i("v_lshl_add_u32 v7, v8, 3, v7")
        a.i("s_lshl_b32 s14, s8, 5")
        a.i(f"s_add_u32 s14, s14, {ABASE}")
        a.i("v_add_u32 v7, s14, v7")
        for tt in range(5): a.i(f"ds_read_b64_tr_b16 v[{AR+16+2*tt}:{AR+16+2*tt+1}], v7 offset:{tt*2560}")
    else:
        a.i("s_waitcnt vmcnt(0)")
    S.stamp()
    for tt in range(5):
        o = ACC + 4*tt
        if use_a and tt == 0: a.i("s_waitcnt lgkmcnt(0)")
        for h in range(2):
            a.i(f"v_lshlrev_b32 v8, 16, v{B2R+2*tt+h}")
            a.i(f"v_and_b32 v9, 0xffff0000, v{B2R+2*tt+h}")
            a.i(f"v_add_f32 v{o+2*h}, v{o+2*h}, v8")
            a.i(f"v_add_f32 v{o+2*h+1}, v{o+2*h+1}, v9")
            if use_a:
                a.i(f"v_lshlrev_b32 v8, 16, v{AR+16+2*tt+h}")
                a.i(f"v_and_b32 v9, 0xffff0000, v{AR+16+2*tt+h}")
                a.i(f"v_sub_f32 v8, v8, v{o+2*h}")
                a.i(f"v_sub_f32 v9, v9, v{o+2*h+1}")
                a.i(f"v_fmac_f32 v{o+2*h}, v156, v8")
                a.i(f"v_fmac_f32 v{o+2*h+1}, v156, v9")
        a.i(f"v_cvt_pk_bf16_f32 v{WF+2*tt}, v{o}, v{o+1}")
        a.i(f"v_cvt_pk_bf16_f32 v{WF+2*tt+1}, v{o+2}, v{o+3}")
        a.i(f"buffer_store_dwordx2 v[{WF+2*tt}:{WF+2*tt+1}], v6, s[{SO}:{SO+3}], 0 offen offset:{32*tt}")
    S.stamp()
    if st_en: a.i("s_waitcnt vmcnt(0)")
    S.stamp(); S.real()
    S.write(1)
    a.i("s_endpgm")
```

```python
from common import *

LOG2E = 0x3fb8aa3b
INV2PI = 0x3e22f983

T_OFF = 4096
P0_OFF = 4096 + 512
P1_OFF = P0_OFF + 1152 + 64
ZA_OFF = P1_OFF + 1152
ZB_OFF = ZA_OFF + 256
ZC_OFF = ZB_OFF + 256
DUMMY_OFF = ZC_OFF + 320 + 64

def gen_s(a, st_en=False, opts=()):
    a.c("==== S role ====")
    S = Stamps(a, st_en)
    S.real(); S.stamp()
    a.i("s_sub_u32 s4, s2, 256")
    a.i("v_lshrrev_b32 v1, 6, v0")
    a.i("v_and_b32 v2, 63, v0")
    a.i("v_readfirstlane_b32 s8, v1")
    a.i("v_and_b32 v3, 15, v2")
    a.i("v_lshrrev_b32 v4, 4, v2")
    a.i("s_lshl_b32 s4, s4, 2")
    a.i("s_add_u32 s4, s4, s8")
    a.i("s_mul_i32 s9, s8, 20480")
    a.i("s_waitcnt lgkmcnt(0)")
    SL, SA, SCR, SCI, SDT, SDS, SUT, SCF, SAT = 48, 52, 56, 60, 64, 68, 72, 76, 80
    if st_en: S.base = 84
    srd(a, SL, P_LAR, 0, 163840); srd(a, SA, P_AIM, 0, 163840); srd(a, SCR, P_CR, 0, 163840); srd(a, SCI, P_CI, 0, 163840)
    srd(a, SDT, P_LDT, 0, 1280); srd(a, SDS, P_DSK, 0, 1280)
    srd(a, SUT, P_WS, UT_OFF, UT_SZ); srd(a, SCF, P_WS, CF_OFF, CF_SZ)
    vm = VM(a)
    a.i("s_lshl_b32 s10, s4, 8")
    a.i("v_lshlrev_b32 v5, 1, v2")
    for h in range(2):
        for k, sr in enumerate((SL, SA, SCR, SCI)):
            vm.issue(f"buffer_load_ushort v{8+2*k+h}, v5, s[{sr}:{sr+3}], s10 offen offset:{128*h}", ("p", h, k))
    a.i("s_lshl_b32 s11, s4, 1")
    a.i("v_mov_b32 v6, 0")
    vm.issue(f"buffer_load_ushort v16, v6, s[{SDT}:{SDT+3}], s11 offen", "dt")
    vm.issue(f"buffer_load_ushort v17, v6, s[{SDS}:{SDS+3}], s11 offen", "ds")
    a.i("v_lshlrev_b32 v7, 4, v2")
    a.i("s_lshl_b32 s12, s4, 12")
    for j in range(4):
        a.i(f"s_add_u32 m0, s9, {j*1024}")
        a.i(f"s_add_u32 s13, s12, {j*1024}")
        vm.issue(f"buffer_load_dwordx4 v7, s[{SUT}:{SUT+3}], s13 offen lds", "ur")
    CF = 200
    a.i("s_mov_b32 s14, 4096")
    for j in range(7):
        so = "0" if j < 4 else "s14"
        vm.issue(f"buffer_load_dwordx4 v[{CF+4*j}:{CF+4*j+3}], v7, s[{SCF}:{SCF+3}], {so} offen offset:{(j%4)*1024}", "cf")
    WA = 128; RA = 136
    a.i("v_bfe_u32 v5, v2, 1, 3")
    a.i("v_lshlrev_b32 v6, 8, v2")
    a.i(f"s_add_u32 s15, s9, {T_OFF}")
    a.i("v_add_u32 v6, s15, v6")
    for idx in range(8):
        a.i(f"v_xor_b32 v18, {idx}, v5")
        a.i(f"v_lshl_add_u32 v{WA+idx}, v18, 5, v6")
    a.i("v_bfe_u32 v5, v2, 2, 2")
    a.i("v_and_b32 v6, 1, v4")
    a.i("v_lshl_or_b32 v5, v6, 2, v5")
    a.i("v_lshrrev_b32 v6, 1, v4")
    a.i("v_lshlrev_b32 v6, 4, v6")
    a.i("v_lshl_add_u32 v6, v5, 1, v6")
    a.i("v_lshlrev_b32 v6, 8, v6")
    a.i("v_and_b32 v18, 3, v2")
    a.i("v_lshl_add_u32 v6, v18, 3, v6")
    a.i("v_add_u32 v6, s15, v6")
    for idx in range(8):
        a.i(f"v_xor_b32 v18, {idx}, v5")
        a.i(f"v_lshl_add_u32 v{RA+idx}, v18, 5, v6")
    vm.wait("ds")
    for r in range(8, 18): a.i(f"v_lshlrev_b32 v{r}, 16, v{r}")
    a.i(f"v_mul_f32 v16, {LOG2E:#x}, v16")
    a.i("v_exp_f32 v16, v16")
    a.i("v_cvt_pk_bf16_f32 v16, v16, v16")
    a.i("v_and_b32 v16, 0xffff0000, v16")
    a.i("v_max3_f32 v18, abs(v12), abs(v13), abs(v14)")
    a.i("v_max_f32 v18, abs(v15), v18")
    for ror in (8, 4, 2, 1):
        a.i(f"v_max_f32_dpp v18, v18, v18 row_ror:{ror} row_mask:0xf bank_mask:0xf")
    for i, ln in enumerate((0, 16, 32, 48)):
        a.i(f"v_readlane_b32 s{84+i if not st_en else 100-4+i}, v18, {ln}")
    b0 = 84 if not st_en else 96
    a.i(f"s_max_u32 s{b0}, s{b0}, s{b0+1}")
    a.i(f"s_max_u32 s{b0+2}, s{b0+2}, s{b0+3}")
    a.i(f"s_max_u32 s{b0}, s{b0}, s{b0+2}")
    a.i(f"s_lshr_b32 s{b0}, s{b0}, 23")
    a.i(f"s_max_u32 s{b0}, s{b0}, 1")
    a.i(f"s_min_u32 s{b0}, s{b0}, 252")
    a.i(f"s_sub_u32 s{b0+1}, 253, s{b0}")
    a.i(f"s_lshl_b32 s{b0+1}, s{b0+1}, 23")
    a.i(f"s_add_u32 s{b0+2}, s{b0}, 2")
    a.i(f"s_lshl_b32 s{b0+2}, s{b0+2}, 23")
    SNEG = b0+1; SPOS = b0+2
    for r in (12, 13, 14, 15): a.i(f"v_mul_f32 v{r}, s{SNEG}, v{r}")
    a.i(f"v_mul_f32 v19, s{SPOS}, v16")
    KACC = 188
    XR = 32; XI = 56; YR = 80; YI = 88
    E = {}
    qs = [1, 2, 4, 8, 16, 32, 64, 128, 256, 512, 1024, 2048]
    for i, q in enumerate(qs): E[q] = (96+2*i, 97+2*i)
    SM = {q: 120+i for i, q in enumerate([2, 4, 16, 32, 64, 128, 256, 512])}
    T0, T1, T2, T3 = 20, 21, 22, 23
    AR, AI, BR, BI = 24, 25, 26, 27
    def direct(q):
        re, im = E[q]
        lit = "1.0" if q == 1 else "0x42000000"
        a.i(f"v_mul_f32 v{T0}, {lit}, v28")
        a.i(f"v_mul_f32 v{T1}, {lit}, v29")
        a.i(f"v_exp_f32 v{T0}, v{T0}")
        a.i(f"v_fract_f32 v{T1}, v{T1}")
        a.i(f"v_cos_f32 v{re}, v{T1}")
        a.i(f"v_sin_f32 v{im}, v{T1}")
        a.i(f"v_mul_f32 v{re}, v{re}, v{T0}")
        a.i(f"v_mul_f32 v{im}, v{im}, v{T0}")
    def sq(q):
        r, i = E[q]; r2, i2 = E[2*q]
        a.i(f"v_mul_f32 v{T0}, v{i}, v{i}")
        a.i(f"v_add_f32 v{T1}, v{r}, v{r}")
        a.i(f"v_fma_f32 v{r2}, v{r}, v{r}, -v{T0}")
        a.i(f"v_mul_f32 v{i2}, v{T1}, v{i}")
    def cm(dr, di, ar, ai, br, bi):
        a.i(f"v_mul_f32 v{T0}, v{ai}, v{bi}")
        a.i(f"v_mul_f32 v{T1}, v{ai}, v{br}")
        a.i(f"v_fma_f32 v{dr}, v{ar}, v{br}, v{T0}")
        a.i(f"v_fma_f32 v{di}, -v{ar}, v{bi}, v{T1}")
    def cmul16(dR, dI, R, I, Sreg, conj):
        n1 = "" if conj else " neg_lo:[0,1,0] neg_hi:[0,1,0]"
        n2 = " neg_lo:[0,1] neg_hi:[0,1]" if conj else ""
        a.i(f"v_pk_mul_f16 v{T2}, v{R}, v{Sreg} op_sel:[0,0] op_sel_hi:[1,0]")
        a.i(f"v_pk_mul_f16 v{T3}, v{R}, v{Sreg} op_sel:[0,1] op_sel_hi:[1,1]{n2}")
        a.i(f"v_pk_fma_f16 v{dR}, v{I}, v{Sreg}, v{T2} op_sel:[0,1,0] op_sel_hi:[1,1,1]{n1}")
        a.i(f"v_pk_fma_f16 v{dI}, v{I}, v{Sreg}, v{T3} op_sel:[0,0,0] op_sel_hi:[1,0,1]")
    def grow(PR, PI, base, n0, steps, conj):
        n = n0
        for st in steps:
            for j in range(n):
                cmul16(PR+base+n+j, PI+base+n+j, PR+base+j, PI+base+j, SM[st], conj)
            n *= 2
    FRG = 144
    S.stamp()
    for h in range(2):
        a.c(f"K-gen pass {h}")
        lar, aim, cr, ci = 8+h, 10+h, 12+h, 14+h
        a.i(f"v_mul_f32 v28, {LOG2E:#x}, v{lar}")
        a.i("v_exp_f32 v28, v28")
        a.i("v_mul_f32 v29, v16, v%d" % aim)
        a.i("v_cvt_pk_bf16_f32 v28, v28, v28")
        a.i(f"v_mul_f32 v29, {INV2PI:#x}, v29")
        a.i("v_and_b32 v28, 0xffff0000, v28")
        a.i("v_mul_f32 v28, v16, v28")
        a.i(f"v_mul_f32 v28, {LOG2E ^ 0x80000000:#x}, v28")
        direct(1); direct(32)
        for q in (1, 2, 4, 8): sq(q)
        for q in (32, 64, 128, 256, 512, 1024): sq(q)
        for q, r in SM.items(): a.i(f"v_cvt_pk_f16_f32 v{r}, v{E[q][0]}, v{E[q][1]}")
        a.i(f"v_cvt_pk_f16_f32 v{YR}, 1.0, v{E[8][0]}")
        a.i(f"v_cvt_pk_f16_f32 v{YI}, 0, v{E[8][1]}")
        a.i(f"v_sub_f32 v30, 0, v{ci}")
        cm(AR, AI, cr, 30, E[1][0], E[1][1])
        a.i(f"v_cvt_pk_f16_f32 v{XR}, v{cr}, v{AR}")
        a.i(f"v_cvt_pk_f16_f32 v{XI}, v30, v{AI}")
        for (j0, qa, qb) in ((8, 256, 2), (12, 512, 4), (16, 1024, 128)):
            cm(AR, AI, cr, 30, E[qa][0], E[qa][1])
            cm(BR, BI, AR, AI, E[qb][0], E[qb][1])
            a.i(f"v_cvt_pk_f16_f32 v{XR+j0}, v{AR}, v{BR}")
            a.i(f"v_cvt_pk_f16_f32 v{XI+j0}, v{AI}, v{BI}")
        cm(AR, AI, cr, 30, E[2048][0], E[2048][1])
        a.i(f"v_cvt_pk_f16_f32 v{XR+20}, v{AR}, 0")
        a.i(f"v_cvt_pk_f16_f32 v{XI+20}, v{AI}, 0")
        if h == 0:
            for j in (21, 22, 23):
                a.i(f"v_mov_b32 v{XR+j}, 0"); a.i(f"v_mov_b32 v{XI+j}, 0")
        grow(YR, YI, 0, 1, (16, 32, 64), False)
        grow(XR, XI, 0, 1, (2, 4, 128), True)
        grow(XR, XI, 8, 1, (4, 128), True)
        grow(XR, XI, 12, 1, (128, 256), True)
        grow(XR, XI, 16, 1, (256, 512), True)
        src = [XR+4*c for c in range(6)] + [XI+4*c for c in range(6)] + [YR, YR+4, YI, YI+4]
        for c in range(16):
            a.i(f"ds_write_b128 v{WA + (c>>1)}, v[{src[c]}:{src[c]+3}] offset:{(c&1)*16}")
        for ks in range(2):
            for pl in range(2):
                R = FRG + ((ks*2+pl) % 2)*16
                for t in range(3):
                    idx = pl*3 + t
                    for e in range(2):
                        a.i(f"ds_read_b64_tr_b16 v[{R+4*t+2*e}:{R+4*t+2*e+1}], v{RA+idx} offset:{256*e + 8192*ks}")
                for e in range(2):
                    a.i(f"ds_read_b64_tr_b16 v[{R+12+2*e}:{R+12+2*e+1}], v{RA+6+pl} offset:{256*e + 8192*ks}")
                a.i("s_waitcnt lgkmcnt(0)")
                for t in range(3):
                    d = KACC + 4*t
                    C = "0" if (h, ks, pl) == (0, 0, 0) else f"v[{d}:{d+3}]"
                    a.i(f"v_mfma_f32_16x16x32_f16 v[{d}:{d+3}], v[{R+4*t}:{R+4*t+3}], v[{R+12}:{R+15}], {C}")
    S.stamp()
    a.c("K outputs")
    for r in range(12): a.i(f"v_mul_f32 v{KACC+r}, v19, v{KACC+r}")
    a.i("v_cmp_eq_u32 vcc, 0, v2")
    a.i("v_add_f32 v20, v17, v%d" % KACC)
    a.i(f"v_cndmask_b32 v{KACC}, v{KACC}, v20, vcc")
    a.i("v_mov_b32 v20, 0"); a.i("v_mov_b32 v21, 0"); a.i("v_mov_b32 v22, 0"); a.i("v_mov_b32 v23, 0")
    a.i("v_add_u32 v24, s15, v7")
    for j in range(4): a.i(f"ds_write_b128 v24, v[20:23] offset:{j*1024}")
    K0, K1, K2t = KACC, KACC+4, KACC+8
    a.i(f"v_cvt_pk_bf16_f32 v32, v{K1}, v{K1}")
    a.i(f"v_cvt_pk_bf16_f32 v33, v{K1}, v{K1+1}")
    a.i(f"v_cvt_pk_bf16_f32 v34, v{K1+1}, v{K1+1}")
    a.i("v_lshlrev_b32 v25, 4, v3")
    a.i(f"s_add_u32 s14, s9, {P0_OFF + (512 - 2 + 16)*2}")
    a.i("v_add_u32 v25, s14, v25")
    a.i("v_subrev_u32 v26, 32, v2")
    a.i("v_cmp_gt_u32 vcc, 2, v26")
    a.i("s_and_saveexec_b64 s[6:7], vcc")
    a.i("ds_write2_b32 v25, v32, v32 offset0:0 offset1:1")
    a.i("ds_write2_b32 v25, v33, v34 offset0:2 offset1:3")
    a.i("s_mov_b64 exec, s[6:7]")
    a.i(f"v_cvt_pk_bf16_f32 v32, v{K1}, v{K1}")
    a.i(f"v_cvt_pk_bf16_f32 v33, v{K1+1}, v{K1+2}")
    a.i(f"v_cvt_pk_bf16_f32 v34, v{K1+2}, v{K1+2}")
    a.i(f"v_cvt_pk_bf16_f32 v35, v{K1+3}, v{K1+3}")
    a.i("v_lshlrev_b32 v25, 8, v4")
    a.i("v_lshl_add_u32 v25, v3, 4, v25")
    a.i(f"s_add_u32 s14, s9, {P0_OFF + (256 + 16)*2 - 2}")
    a.i("v_add_u32 v25, s14, v25")
    a.i("v_cmp_gt_u32 vcc, 32, v2")
    a.i("s_and_saveexec_b64 s[6:7], vcc")
    a.i("ds_write_b16 v25, v32")
    a.i("ds_write_b64 v25, v[32:33] offset:2")
    a.i("ds_write_b32 v25, v34 offset:10")
    a.i("ds_write_b16 v25, v35 offset:14")
    a.i("s_mov_b64 exec, s[6:7]")
    a.i(f"v_cvt_pk_bf16_f32 v36, v{K0}, v{K0+1}")
    a.i(f"v_cvt_pk_bf16_f32 v37, v{K0+2}, v{K0+3}")
    a.i("v_lshrrev_b32 v25, 1, v4")
    a.i("v_lshlrev_b32 v25, 8, v25")
    a.i("v_lshl_add_u32 v25, v3, 4, v25")
    a.i("v_and_b32 v26, 1, v4")
    a.i("v_lshl_add_u32 v25, v26, 3, v25")
    a.i(f"s_add_u32 s14, s9, {P0_OFF + 32}")
    a.i("v_add_u32 v25, s14, v25")
    a.i("ds_write_b64 v25, v[36:37]")
    a.i(f"v_cvt_pk_bf16_f32 v32, v{K1}, v{K1+1}")
    a.i(f"v_cvt_pk_bf16_f32 v33, v{K1+2}, v{K1+3}")
    a.i("v_add_u32 v25, 1, v3")
    a.i("v_lshrrev_b32 v25, 1, v25")
    a.i("v_lshl_add_u32 v25, v4, 4, v25")
    a.i("v_subrev_u32 v25, 1, v25")
    a.i("v_sub_u32 v26, 71, v25")
    a.i("v_lshlrev_b32 v26, 2, v26")
    a.i("v_and_b32 v27, 1, v3")
    a.i(f"v_mov_b32 v29, {ZB_OFF}")
    a.i(f"v_mov_b32 v30, {ZA_OFF}")
    a.i("v_cmp_eq_u32 vcc, 1, v27")
    a.i("v_cndmask_b32 v29, v29, v30, vcc")
    a.i("v_add_u32 v26, v26, v29")
    a.i("v_add_u32 v26, s9, v26")
    a.i("v_cmp_le_u32 vcc, 32, v2")
    a.i("s_and_saveexec_b64 s[6:7], vcc")
    a.i("ds_write_b32 v26, v33")
    a.i("v_cmp_le_u32 vcc, 34, v2")
    a.i("s_and_b64 exec, exec, vcc")
    a.i("ds_write_b32 v26, v32 offset:32")
    a.i("s_mov_b64 exec, s[6:7]")
    for r in range(4): a.i(f"v_cvt_pk_bf16_f32 v{32+r}, v{K2t+r}, v{K2t+r}")
    a.i("v_add_u32 v25, 1, v3")
    a.i("v_lshrrev_b32 v25, 1, v25")
    a.i("v_lshl_add_u32 v25, v4, 5, v25")
    a.i("v_sub_u32 v26, 40, v25")
    a.i("v_lshlrev_b32 v26, 2, v26")
    a.i("v_and_b32 v27, 1, v3")
    a.i("v_xor_b32 v27, 1, v27")
    a.i("v_lshl_add_u32 v26, v27, 1, v26")
    a.i(f"s_add_u32 s14, s9, {ZC_OFF}")
    a.i("v_add_u32 v26, s14, v26")
    a.i("v_cmp_gt_u32 vcc, 32, v2")
    a.i("s_and_saveexec_b64 s[6:7], vcc")
    for r in (3, 2, 1): a.i(f"ds_write_b16 v26, v{32+r} offset:{(3-r)*32}")
    a.i("v_cmp_lt_u32 vcc, 0, v2")
    a.i("s_and_b64 exec, exec, vcc")
    a.i("ds_write_b16 v26, v32 offset:96")
    a.i("s_mov_b64 exec, s[6:7]")
    a.i(f"v_mov_b32 v26, {ZB_OFF + 16*4}")
    a.i(f"v_mov_b32 v27, {ZC_OFF + 2}")
    a.i("v_cmp_eq_u32 vcc, 32, v2")
    a.i("v_cndmask_b32 v26, v26, v27, vcc")
    a.i("v_add_u32 v26, s9, v26")
    a.i("v_and_b32 v27, 31, v2")
    a.i("v_cmp_eq_u32 vcc, 0, v27")
    a.i("s_and_saveexec_b64 s[6:7], vcc")
    a.i("ds_write_b16 v26, v32")
    a.i("s_mov_b64 exec, s[6:7]")
    a.i("v_readlane_b32 s5, v32, 0")
    a.i(f"s_add_u32 s13, s9, {P0_OFF}")
    a.i("v_add_u32 v25, s13, v7")
    for rnd in range(2):
        if rnd == 1:
            a.i("v_cmp_gt_u32 vcc, 6, v2")
            a.i("s_and_saveexec_b64 s[6:7], vcc")
        a.i(f"ds_read_b128 v[36:39], v25 offset:{rnd*1024}")
        a.i(f"ds_read_b32 v40, v25 offset:{rnd*1024+16}")
        a.i("s_waitcnt lgkmcnt(0)")
        for i in range(4): a.i(f"v_alignbit_b32 v{44+i}, v{37+i}, v{36+i}, 16")
        a.i(f"ds_write_b128 v25, v[44:47] offset:{rnd*1024 + P1_OFF - P0_OFF}")
        if rnd == 1: a.i("s_mov_b64 exec, s[6:7]")
    S.stamp()
    if "dumpk" in opts:
        SK = 88
        srd(a, SK, P_WS, AT_OFF, AT_SZ)
        a.i("s_waitcnt lgkmcnt(0)")
        a.i("v_add_u32 v24, s15, v7")
        for j in range(4):
            a.i(f"ds_read_b128 v[36:39], v24 offset:{j*1024}")
            a.i("s_waitcnt lgkmcnt(0)")
            a.i(f"s_add_u32 s13, s12, {j*1024}")
            a.i(f"buffer_store_dwordx4 v[36:39], v7, s[{SK}:{SK+3}], s13 offen")
            a.i("s_nop 2")
        a.i("s_waitcnt vmcnt(0)")
        a.i("s_endpgm")
        return
    conv(a, S, vm, opts, st_en)

def conv(a, S, vm, opts, st_en):
    a.c("conv")
    CF = 200
    ACC = 32; AN = 64; FIX = 132; BB = 136; ZT = 152
    DW = [192, 196, 236, 240, 244, 248]; APPA, APPB, APPC = 228, 232, 252
    VB, VAN, VAN2, VZ = 8, 9, 10, 11
    a.i("v_lshlrev_b32 v12, 5, v3")
    a.i("v_lshlrev_b32 v13, 4, v4")
    a.i("v_sub_u32 v12, v13, v12")
    a.i("s_add_u32 s13, s9, 480")
    a.i(f"v_add_u32 v{VB}, s13, v12")
    a.i("v_add_u32 v12, 1, v3")
    a.i("v_lshrrev_b32 v12, 1, v12")
    a.i("v_lshl_add_u32 v12, v4, 2, v12")
    a.i("v_lshlrev_b32 v12, 2, v12")
    a.i("v_and_b32 v13, 1, v3")
    a.i(f"v_mov_b32 v14, {P1_OFF}")
    a.i(f"v_mov_b32 v15, {P0_OFF}")
    a.i("v_cmp_eq_u32 vcc, 1, v13")
    a.i("v_cndmask_b32 v14, v14, v15, vcc")
    a.i("v_add_u32 v12, v12, v14")
    a.i(f"v_add_u32 v{VAN}, s9, v12")
    a.i(f"v_add_u32 v{VAN2}, 1024, v{VAN}")
    a.i("v_lshlrev_b32 v12, 2, v4")
    a.i("v_sub_u32 v12, v12, v3")
    a.i("v_add_u32 v12, 15, v12")
    a.i("v_lshlrev_b32 v12, 2, v12")
    a.i(f"s_add_u32 s13, s9, {ZA_OFF}")
    a.i(f"v_add_u32 v{VZ}, s13, v12")
    zt = {}
    k = 0
    for name, base, deltas, top in (("A", 0, (2,3,4), 4), ("B", 64, (2,3,4), 4), ("C", 128, (4,5,6,7), 7)):
        for dl in deltas:
            r = ZT + 4*k; k += 1; zt[(name, dl)] = r
            o = base + 16*(top - dl)
            a.i(f"ds_read2_b32 v[{r}:{r+1}], v{VZ} offset0:{o} offset1:{o+1}")
            a.i(f"ds_read2_b32 v[{r+2}:{r+3}], v{VZ} offset0:{o+2} offset1:{o+3}")
    vm.wait("cf")
    S.stamp()
    for i in range(4): a.i(f"v_and_b32 v{FIX+i}, s5, v{CF+24+i}")
    inited = set()
    def accm(J, A, B):
        d = ACC + 4*J
        C = f"v[{d}:{d+3}]" if J in inited else "0"
        inited.add(J)
        a.i(f"v_mfma_f32_16x16x32_bf16 v[{d}:{d+3}], v[{A}:{A+3}], v[{B}:{B+3}], {C}")
    def ldT(kap):
        r = BB + (kap % 2)*8
        a.i(f"ds_read_b128 v[{r}:{r+3}], v{VB} offset:{3584 - 512*kap}")
        a.i(f"ds_read_b128 v[{r+4}:{r+7}], v{VB} offset:{3600 - 512*kap}")
    def ldAN(s):
        r = AN + 4*s
        if s < 16:
            a.i(f"ds_read2_b32 v[{r}:{r+1}], v{VAN} offset0:{16*s} offset1:{16*s+1}")
            a.i(f"ds_read2_b32 v[{r+2}:{r+3}], v{VAN} offset0:{16*s+2} offset1:{16*s+3}")
        else:
            a.i(f"ds_read2_b32 v[{r}:{r+1}], v{VAN2} offset0:0 offset1:1")
            a.i(f"ds_read2_b32 v[{r+2}:{r+3}], v{VAN2} offset0:2 offset1:3")
    ldT(0); ldT(1)
    an_next = 0
    for kap in range(6):
        Ta = BB + (kap % 2)*8; Tb = Ta + 4
        a.i("s_waitcnt lgkmcnt(2)" if kap == 0 else f"s_waitcnt lgkmcnt({pend})")
        w = lambda D, T, c: a.i(f"v_mfma_f32_16x16x32_bf16 v[{D}:{D+3}], v[{T}:{T+3}], v[{CF+4*c}:{CF+4*c+3}], 0")
        w(DW[0], Ta, 0); w(DW[1], Ta, 1); w(DW[2], Tb, 3); w(DW[3], Tb, 4)
        if kap <= 3: w(DW[4], Ta, 2); w(DW[5], Tb, 5)
        pend = 0
        for _ in range(3):
            if an_next < 17: ldAN(an_next); an_next += 1; pend += 2
        if kap + 2 < 6: ldT(kap + 2); pend = 2
        else: pend = 0
        for j in range(4): a.i(f"v_cvt_pk_bf16_f32 v{APPA+j}, v{DW[0]+j}, v{DW[1]+j}")
        for j in range(4): a.i(f"v_cvt_pk_bf16_f32 v{APPB+j}, v{DW[2]+j}, v{DW[3]+j}")
        if kap <= 3:
            for j in range(4): a.i(f"v_cvt_pk_bf16_f32 v{APPC+j}, v{DW[4]+j}, v{DW[5]+j}")
        for dl in (2, 3, 4):
            if kap + dl <= 7:
                accm(kap + dl, APPA, zt[("A", dl)])
                accm(kap + dl, APPB, zt[("B", dl)])
        if kap <= 3:
            for dl in (4, 5, 6, 7):
                if kap + dl <= 7: accm(kap + dl, APPC, zt[("C", dl)])
    while an_next < 17: ldAN(an_next); an_next += 1
    S.stamp()
    taus = list(range(56, -8, -1))
    def ldB(i):
        r = BB + (i % 4)*4
        a.i(f"ds_read_b128 v[{r}:{r+3}], v{VB} offset:{64*(56 - taus[i])}")
    a.i("s_waitcnt lgkmcnt(0)")
    for i in range(3): ldB(i)
    for i, tau in enumerate(taus):
        if i + 3 < len(taus): ldB(i + 3)
        a.i(f"s_waitcnt lgkmcnt({min(3, len(taus) - 1 - i)})")
        B = BB + (i % 4)*4
        for J in range(8):
            s = 8*J - tau
            if 0 <= s <= 16: accm(J, AN + 4*s, B)
            if s == 32 and J >= 4: accm(J, FIX, B)
    S.stamp()
    SAT = 80; SDB = 76
    srd(a, SAT, P_WS, AT_OFF, AT_SZ)
    srd(a, SDB, P_DBG, 0, 256)
    a.i("v_lshlrev_b32 v12, 5, v3")
    a.i("v_lshl_add_u32 v12, v4, 3, v12")
    for J in range(8):
        d = ACC + 4*J
        r = AN + 2*J
        a.i(f"v_cvt_pk_bf16_f32 v{r}, v{d}, v{d+1}")
        a.i(f"v_cvt_pk_bf16_f32 v{r+1}, v{d+2}, v{d+3}")
        a.i(f"buffer_store_dwordx2 v[{r}:{r+1}], v12, s[{SAT}:{SAT+3}], s12 offen offset:{512*J} sc1")
    a.i("s_mul_i32 s13, s4, 205")
    a.i("s_lshr_b32 s13, s13, 14")
    a.i("s_lshl_b32 s13, s13, 5")
    a.i("v_mov_b32 v13, s13")
    a.i("v_mov_b32 v14, 1")
    a.i("s_waitcnt vmcnt(0)")
    a.i("v_cmp_eq_u32 vcc, 0, v2")
    a.i("s_and_saveexec_b64 s[6:7], vcc")
    a.i(f"buffer_atomic_add v14, v13, s[{SDB}:{SDB+3}], 0 offen sc1")
    a.i("s_mov_b64 exec, s[6:7]")
    S.stamp(); S.real()
    S.write(1, vt=14, srd=48)
    a.i("s_endpgm")
```

```python
from common import *

def gen_t(a, opts=()):
    a.c("==== T role ====")
    a.i("s_sub_u32 s4, s2, 224")
    a.i("v_lshrrev_b32 v1, 6, v0")
    a.i("v_and_b32 v2, 63, v0")
    a.i("v_readfirstlane_b32 s8, v1")
    a.i("s_waitcnt lgkmcnt(0)")
    SW2, SP, SU, SUT, SCF = 48, 52, 56, 60, 64
    srd(a, SW2, P_W2, 0, 1728*1280)
    srd(a, SP, P_WS, W2P_OFF, W2P_SZ)
    srd(a, SU, P_U, 0, 2048*1280)
    srd(a, SUT, P_WS, UT_OFF, UT_SZ)
    srd(a, SCF, P_WS, CF_OFF, CF_SZ)
    a.i("s_lshl_b32 s5, s4, 3")
    a.i("s_add_u32 s5, s5, s8")
    a.i("v_lshrrev_b32 v3, 3, v2")
    a.i("v_mul_u32_u24 v3, 1280, v3")
    a.i("v_and_b32 v4, 7, v2")
    a.i("v_lshl_add_u32 v10, v4, 4, v3")
    a.i("s_mul_i32 s9, s8, 20480")
    vm = VM(a)
    for i in range(3):
        a.i(f"s_add_u32 s10, s5, {256*i}")
        a.i("s_min_u32 s10, s10, 539")
        a.i("s_mul_i32 s11, s10, 52429")
        a.i(f"s_lshr_b32 s{72+2*i}, s11, 19")
        a.i(f"s_mul_i32 s11, s{72+2*i}, 10")
        a.i(f"s_sub_u32 s{73+2*i}, s10, s11")
        a.i(f"s_mul_i32 s12, s{72+2*i}, 40960")
        a.i(f"s_lshl_b32 s13, s{73+2*i}, 7")
        a.i("s_add_u32 s12, s12, s13")
        for jj in range(4):
            a.i(f"s_add_u32 m0, s9, {i*4096 + jj*1024}")
            vm.issue(f"buffer_load_dwordx4 v10, s[{SW2}:{SW2+3}], s12 offen lds", ("u", i) if jj == 3 else None)
            if jj < 3: a.i("s_add_u32 s12, s12, 10240")
    def ut_issue(i, slot):
        a.i(f"s_add_u32 s10, s8, {8*i}")
        a.i("s_min_u32 s10, s10, 19")
        a.i("s_cmp_ge_u32 s10, 10")
        a.i("s_cselect_b32 s11, 1, 0")
        a.i("s_mul_i32 s12, s11, 10")
        a.i(f"s_sub_u32 s{78+2*i}, s10, s12")
        a.i("s_lshl_b32 s12, s4, 6")
        a.i("s_lshl_b32 s11, s11, 5")
        a.i(f"s_add_u32 s{79+2*i}, s12, s11")
        a.i(f"s_mul_i32 s12, s{79+2*i}, 1280")
        a.i(f"s_lshl_b32 s13, s{78+2*i}, 7")
        a.i("s_add_u32 s12, s12, s13")
        for jj in range(4):
            a.i(f"s_add_u32 m0, s9, {slot*4096 + jj*1024}")
            vm.issue(f"buffer_load_dwordx4 v10, s[{SU}:{SU+3}], s12 offen lds", ("t", i) if jj == 3 else None)
            if jj < 3: a.i("s_add_u32 s12, s12, 10240")
    ut_issue(0, 3); ut_issue(1, 4)
    lcf = a.newlabel("TCF")
    a.i("s_cmp_lg_u32 s5, 0")
    a.i(f"s_cbranch_scc1 {lcf}")
    a.i("v_and_b32 v3, 15, v2")
    a.i("v_lshrrev_b32 v4, 4, v2")
    a.i("v_lshl_add_u32 v3, v4, 3, v3")
    a.i("v_lshlrev_b32 v12, 4, v2")
    a.i("v_mov_b32 v13, 0")
    specs = [(-15, 8, 2), (-15, 12, 1), (-15, 8, 3), (-7, 16, 2), (-7, 20, 1), (-7, 16, 4), None]
    for f, sp in enumerate(specs):
        if sp: off, width, val = sp[0] - sp[1] + sp[2], 2*sp[2]+1, 0x3F80
        else: off, width, val = -18, 2, 0xFFFF
        a.i(f"v_mov_b32 v14, {val:#x}")
        a.i(f"v_mov_b32 v15, {val << 16:#x}")
        for j in range(4):
            a.i(f"v_add_u32 v5, {off + 2*j}, v3")
            a.i(f"v_add_u32 v6, {off + 2*j + 1}, v3")
            a.i(f"v_cmp_gt_u32 vcc, {width}, v5")
            a.i(f"v_cndmask_b32 v7, v13, v14, vcc")
            a.i(f"v_cmp_gt_u32 vcc, {width}, v6")
            a.i(f"v_cndmask_b32 v8, v13, v15, vcc")
            a.i(f"v_or_b32 v{16+j}, v7, v8")
        a.i(f"s_mov_b32 s10, {f*1024}")
        a.i(f"buffer_store_dwordx4 v[16:19], v12, s[{SCF}:{SCF+3}], s10 offen")
        a.i("s_nop 1")
    a.label(lcf)
    vm_extra = None
    a.i("v_lshrrev_b32 v3, 4, v2")
    a.i("v_bfe_u32 v4, v2, 2, 2")
    a.i("v_and_b32 v5, 3, v2")
    a.i("v_lshl_add_u32 v6, v3, 2, v4")
    a.i("v_lshlrev_b32 v6, 7, v6")
    a.i("v_lshl_add_u32 v6, v5, 3, v6")
    a.i("v_add_u32 v11, s9, v6")
    a.i("v_lshlrev_b32 v12, 4, v2")
    a.i("v_lshlrev_b32 v6, 3, v3")
    a.i("v_add_u32 v6, 3, v6")
    a.i("v_sub_u32 v6, v6, v4")
    a.i("v_lshlrev_b32 v6, 7, v6")
    a.i("v_lshl_add_u32 v6, v5, 3, v6")
    a.i("v_add_u32 v13, s9, v6")
    a.i("v_and_b32 v6, 15, v2")
    a.i("v_lshlrev_b32 v6, 6, v6")
    a.i("v_sub_u32 v7, 3, v3")
    a.i("v_lshl_add_u32 v6, v7, 4, v6")
    a.i("v_add_u32 v14, s9, v6")
    a.i("v_add_u32 v15, s9, v12")
    a.i("v_lshrrev_b32 v6, 2, v2")
    a.i("v_lshlrev_b32 v6, 12, v6")
    a.i("v_lshl_add_u32 v9, v5, 4, v6")
    for i in range(3):
        vm.wait(("u", i))
        R = 16 + (i % 2) * 16
        for tt in range(4):
            for e in range(2):
                a.i(f"ds_read_b64_tr_b16 v[{R+4*tt+2*e}:{R+4*tt+2*e+1}], v11 offset:{i*4096 + e*2048 + tt*32}")
        for tt in range(4):
            a.i(f"s_lshl_b32 s10, s{73+2*i}, 2")
            a.i(f"s_add_u32 s10, s10, {tt}")
            a.i("s_mul_i32 s11, s10, 13")
            a.i("s_lshr_b32 s11, s11, 6")
            a.i("s_mul_i32 s12, s11, 5")
            a.i("s_sub_u32 s12, s10, s12")
            a.i("s_mul_i32 s11, s11, 54")
            a.i(f"s_add_u32 s11, s11, s{72+2*i}")
            a.i("s_mul_i32 s11, s11, 5")
            a.i("s_add_u32 s11, s11, s12")
            a.i("s_lshl_b32 s11, s11, 10")
            a.i(f"s_waitcnt lgkmcnt({6-2*tt})")
            vm.issue(f"buffer_store_dwordx4 v[{R+4*tt}:{R+4*tt+3}], v12, s[{SP}:{SP+3}], s11 offen")
        if i == 0: ut_issue(2, 0)
    slots = [3, 4, 0]
    for i in range(3):
        sl = slots[i]
        vm.wait(("t", i))
        R = 48 + (i % 2) * 32
        for tt in range(4):
            a.i(f"ds_read_b64_tr_b16 v[{R+4*tt}:{R+4*tt+1}], v13 offset:{sl*4096 + tt*32 + 512}")
            a.i(f"ds_read_b64_tr_b16 v[{R+4*tt+2}:{R+4*tt+3}], v13 offset:{sl*4096 + tt*32}")
        a.i("s_waitcnt lgkmcnt(0)")
        for tt in range(4):
            a.i(f"ds_write_b128 v14, v[{R+4*tt}:{R+4*tt+3}] offset:{sl*4096 + tt*1024}")
        for tt in range(4):
            a.i(f"ds_read_b128 v[{R+16+4*tt}:{R+16+4*tt+3}], v15 offset:{sl*4096 + tt*1024}")
        a.i(f"s_lshl_b32 s10, s{78+2*i}, 18")
        a.i(f"s_lshl_b32 s11, s{79+2*i}, 1")
        a.i("s_sub_u32 s11, 4032, s11")
        a.i("s_add_u32 s10, s10, s11")
        for tt in range(4):
            a.i(f"s_waitcnt lgkmcnt({3-tt})")
            vm.issue(f"buffer_store_dwordx4 v[{R+16+4*tt}:{R+16+4*tt+3}], v9, s[{SUT}:{SUT+3}], s10 offen")
            a.i("s_add_u32 s10, s10, 65536")
    a.i("s_endpgm")
```

```python
from common import *

def gen_g2(a, use_a=False, st_en=False, opts=()):
    a.c("==== G2 role ====")
    S = Stamps(a, st_en, base=76)
    S.real(); S.stamp()
    a.i("s_and_b32 s4, s2, 7")
    a.i("s_lshr_b32 s5, s2, 3")
    a.i("s_lshr_b32 s6, s5, 2")
    a.i("s_and_b32 s5, s5, 3")
    a.i("s_and_b32 s7, s4, 1")
    a.i("s_lshl_b32 s7, s7, 2")
    a.i("s_add_u32 s5, s5, s7")
    a.i("s_lshr_b32 s4, s4, 1")
    a.i("s_lshl_b32 s4, s4, 3")
    a.i("s_add_u32 s4, s4, s6")
    a.i("v_lshrrev_b32 v1, 6, v0")
    a.i("v_and_b32 v2, 63, v0")
    a.i("v_readfirstlane_b32 s8, v1")
    a.i("v_lshlrev_b32 v10, 4, v2")
    a.i("v_add_u32 v11, 4096, v10")
    a.i("s_waitcnt lgkmcnt(0)")
    SH, SP, SO, SB2, SG, SDB, SAT = 48, 52, 56, 60, 64, 68, 72
    srd(a, SH, P_WS, HP_OFF, HP_SZ)
    srd(a, SP, P_WS, W2P_OFF, W2P_SZ)
    a.i("s_mul_i32 s9, s8, 14")
    a.i("s_cmp_eq_u32 s8, 3")
    a.i("s_cselect_b32 s10, 1, 0")
    a.i("s_sub_u32 s9, s9, s10")
    a.i("s_mul_i32 s11, s4, 54")
    a.i("s_add_u32 s11, s11, s9")
    a.i("s_lshl_b32 s11, s11, 12")
    a.i("s_mul_i32 s12, s5, 54")
    a.i("s_add_u32 s12, s12, s9")
    a.i("s_mul_i32 s12, s12, 5120")
    ACC = 16; BUF = 96; NB = 4
    vm = VM(a)
    def issue_ops(step):
        R = BUF + (step % NB) * 36
        ops = []
        for tt in range(5):
            vo = 10 if tt < 4 else 11
            ops.append((f"buffer_load_dwordx4 v[{R+4*tt}:{R+4*tt+3}], v{vo}, s[{SP}:{SP+3}], s12 offen offset:{(tt%4)*1024}", None))
        for t in range(4):
            ops.append((f"buffer_load_dwordx4 v[{R+20+4*t}:{R+20+4*t+3}], v10, s[{SH}:{SH+3}], s11 offen offset:{t*1024}", ("s", step) if t == 3 else None))
        return ops
    def adv():
        a.i("s_add_u32 s11, s11, 4096")
        a.i("s_add_u32 s12, s12, 5120")
    for step in range(NB-1):
        for o, tg in issue_ops(step): vm.issue(o, tg)
        adv()
    srd(a, SO, P_OUT, 0, 2048*1280)
    srd(a, SB2, P_B2, 0, 1280)
    srd(a, SG, P_WS, G_OFF, G_SZ)
    srd(a, SDB, P_DBG, 0, 256)
    srd(a, SAT, P_WS, AT_OFF, AT_SZ)
    a.i("v_lshrrev_b32 v3, 4, v2")
    a.i("v_and_b32 v4, 15, v2")
    a.i("s_mul_i32 s14, s5, 160")
    a.i("v_lshlrev_b32 v5, 3, v3")
    a.i("v_add_u32 v5, s14, v5")
    B2R = 240; GR = 250
    for tt in range(5):
        vm.issue(f"buffer_load_dwordx2 v[{B2R+2*tt}:{B2R+2*tt+1}], v5, s[{SB2}:{SB2+3}], 0 offen offset:{32*tt}")
    a.i("s_lshl_b32 s15, s4, 6")
    a.i("s_lshl_b32 s14, s8, 4")
    a.i("s_add_u32 s15, s15, s14")
    a.i("v_add_u32 v6, s15, v4")
    a.i("v_lshlrev_b32 v7, 2, v6")
    vm.issue(f"buffer_load_dword v{GR}, v7, s[{SG}:{SG+3}], 0 offen")
    a.i("v_mul_u32_u24 v6, 1280, v6")
    a.i("v_add_u32 v6, v6, v5")
    if "notouch" not in opts:
        vm.issue(f"buffer_load_dword v251, v6, s[{SO}:{SO+3}], 0 offen")
        a.i("s_mul_i32 s13, s5, 327680")
        vm.issue(f"buffer_load_dword v251, v10, s[{SAT}:{SAT+3}], s13 offen")
    llast = a.newlabel("G2L")
    for step in range(14):
        if step == 13:
            a.flush()
            a.i("s_cmp_ge_u32 s8, 2")
            a.i(f"s_cbranch_scc1 {llast}")
        R = BUF + (step % NB) * 36
        vm.wait(("s", step))
        if step in (0, 1, 4, 8): S.stamp()
        ld = issue_ops(step + NB - 1) if step + NB - 1 < 14 else []
        i = 0
        for tt in range(5):
            for t in range(4):
                d = ACC + (tt*4+t)*4
                C = "0" if step == 0 else f"v[{d}:{d+3}]"
                a.i(f"v_mfma_f32_16x16x32_bf16 v[{d}:{d+3}], v[{R+4*tt}:{R+4*tt+3}], v[{R+20+4*t}:{R+20+4*t+3}], {C}")
                if i % 2 == 1 and ld:
                    o, tg = ld.pop(0); vm.issue(o, tg)
                i += 1
        if step + NB - 1 < 14: adv()
    a.label(llast)
    a.flush()
    S.stamp()
    a.c("G2 epilogue: cross-wave reduction")
    a.i("s_mul_i32 s13, s8, 15360")
    a.i("v_add_u32 v12, s13, v10")
    for t in range(4):
        lsk = a.newlabel("G2S")
        a.i(f"s_cmp_eq_u32 s8, {t}")
        a.i(f"s_cbranch_scc1 {lsk}")
        a.i(f"s_cmp_lt_u32 s8, {t}")
        a.i(f"s_cselect_b32 s14, 5120, 0")
        a.i(f"s_sub_u32 s14, {t*5120}, s14")
        a.i("v_add_u32 v13, s14, v12")
        for tt in range(5):
            d = ACC + (tt*4+t)*4
            a.i(f"ds_write_b128 v13, v[{d}:{d+3}] offset:{tt*1024}")
        a.label(lsk)
    AR = BUF + 72
    ABASE = 61440
    if use_a:
        lna = a.newlabel("G2NA")
        a.i("s_cmp_lg_u32 s8, 3")
        a.i(f"s_cbranch_scc1 {lna}")
        a.i("s_lshl_b32 s13, s5, 5")
        a.i("v_min_u32 v7, 4, v2")
        a.i("v_lshlrev_b32 v7, 2, v7")
        a.i("v_add_u32 v7, s13, v7")
        a.i("v_mov_b32 v9, 0x01010101")
        lp = a.newlabel("G2POLL"); ld = a.newlabel("G2RDY")
        a.i("s_mov_b32 s14, 0")
        a.label(lp)
        a.i(f"buffer_load_dword v8, v7, s[{SDB}:{SDB+3}], 0 offen sc1")
        a.i("s_waitcnt vmcnt(0)")
        a.i("v_cmp_ne_u32 vcc, v8, v9")
        a.i("s_nop 4")
        a.i(f"s_cbranch_vccz {ld}")
        a.i("s_add_u32 s14, s14, 1")
        a.i("s_cmp_ge_u32 s14, 4096")
        a.i(f"s_cbranch_scc1 {ld}")
        a.i("s_sleep 8")
        a.i(f"s_branch {lp}")
        a.label(ld)
        a.i("v_lshrrev_b32 v7, 3, v2")
        a.i("v_lshlrev_b32 v8, 12, v7")
        a.i("v_and_b32 v9, 7, v2")
        a.i("v_lshl_add_u32 v8, v9, 4, v8")
        a.i("s_mul_i32 s13, s5, 327680")
        a.i("s_lshl_b32 s14, s4, 7")
        a.i("s_add_u32 s13, s13, s14")
        a.i("v_mul_u32_u24 v7, 160, v7")
        a.i("v_lshl_add_u32 v7, v9, 4, v7")
        a.i(f"v_add_u32 v7, {ABASE}, v7")
        for kk in range(10):
            a.i(f"buffer_load_dwordx4 v[{AR+4*kk}:{AR+4*kk+3}], v8, s[{SAT}:{SAT+3}], s13 offen sc1")
            a.i("s_add_u32 s13, s13, 32768")
        for kk in range(10):
            a.i(f"s_waitcnt vmcnt({9-kk})")
            a.i(f"ds_write_b128 v7, v[{AR+4*kk}:{AR+4*kk+3}] offset:{kk*1280}")
        a.label(lna)
        a.i("s_waitcnt vmcnt(0)")
        S.stamp()
    else:
        a.i("s_waitcnt vmcnt(0)")
    a.i("s_waitcnt lgkmcnt(0)")
    a.i("s_barrier")
    S.stamp()
    OWN = BUF
    for t in range(4):
        lsk = a.newlabel("G2M")
        a.i(f"s_cmp_lg_u32 s8, {t}")
        a.i(f"s_cbranch_scc1 {lsk}")
        for tt in range(5):
            d = ACC + (tt*4+t)*4
            for r in range(0, 4, 2): a.i(f"v_pk_add_f32 v[{OWN+4*tt+r}:{OWN+4*tt+r+1}], v[{d+r}:{d+r+1}], 0")
        a.label(lsk)
    RD = ACC
    for k in range(1, 4):
        a.i(f"s_add_u32 s13, s8, {k}")
        a.i("s_and_b32 s13, s13, 3")
        a.i("s_cmp_lt_u32 s8, s13")
        a.i("s_cselect_b32 s14, 0, 1")
        a.i("s_sub_u32 s14, s8, s14")
        a.i("s_mul_i32 s13, s13, 15360")
        a.i("s_mul_i32 s14, s14, 5120")
        a.i("s_add_u32 s13, s13, s14")
        a.i(f"v_add_u32 v{12+k}, s13, v10")
    a.flush()
    for k in range(1, 4):
        for tt in range(5):
            r = RD + ((k-1)*5+tt)*4
            a.i(f"ds_read_b128 v[{r}:{r+3}], v{12+k} offset:{tt*1024}")
    if use_a:
        a.i("v_bfe_u32 v7, v2, 2, 2")
        a.i("v_lshl_add_u32 v7, v3, 2, v7")
        a.i("v_mul_u32_u24 v7, 160, v7")
        a.i("v_and_b32 v8, 3, v2")
        a.i("v_lshl_add_u32 v7, v8, 3, v7")
        a.i("s_lshl_b32 s14, s8, 5")
        a.i(f"s_add_u32 s14, s14, {ABASE}")
        a.i("v_add_u32 v7, s14, v7")
        for tt in range(5): a.i(f"ds_read_b64_tr_b16 v[{AR+16+2*tt}:{AR+16+2*tt+1}], v7 offset:{tt*2560}")
    na = 5 if use_a else 0
    for k in range(1, 4):
        a.i(f"s_waitcnt lgkmcnt({min(15, (3-k)*5 + na)})")
        for tt in range(5):
            r = RD + ((k-1)*5+tt)*4
            for j in range(0, 4, 2):
                a.i(f"v_pk_add_f32 v[{OWN+4*tt+j}:{OWN+4*tt+j+1}], v[{OWN+4*tt+j}:{OWN+4*tt+j+1}], v[{r+j}:{r+j+1}]")
    a.i("s_waitcnt lgkmcnt(0)")
    WF = BUF + 40
    for tt in range(5):
        o = OWN + 4*tt
        for h in range(2):
            a.i(f"v_lshlrev_b32 v8, 16, v{B2R+2*tt+h}")
            a.i(f"v_and_b32 v9, 0xffff0000, v{B2R+2*tt+h}")
            a.i(f"v_add_f32 v{o+2*h}, v{o+2*h}, v8")
            a.i(f"v_add_f32 v{o+2*h+1}, v{o+2*h+1}, v9")
            if use_a:
                a.i(f"v_lshlrev_b32 v8, 16, v{AR+16+2*tt+h}")
                a.i(f"v_and_b32 v9, 0xffff0000, v{AR+16+2*tt+h}")
                a.i(f"v_sub_f32 v8, v8, v{o+2*h}")
                a.i(f"v_sub_f32 v9, v9, v{o+2*h+1}")
                a.i(f"v_fmac_f32 v{o+2*h}, v{GR}, v8")
                a.i(f"v_fmac_f32 v{o+2*h+1}, v{GR}, v9")
        a.i(f"v_cvt_pk_bf16_f32 v{WF+2*tt}, v{o}, v{o+1}")
        a.i(f"v_cvt_pk_bf16_f32 v{WF+2*tt+1}, v{o+2}, v{o+3}")
        a.i(f"buffer_store_dwordx2 v[{WF+2*tt}:{WF+2*tt+1}], v6, s[{SO}:{SO+3}], 0 offen offset:{32*tt}")
    S.stamp()
    S.real()
    if st_en: a.i("s_waitcnt vmcnt(0)")
    S.write(1, srd=48)
    a.i("s_endpgm")
```

```python
from common import *

LOG2E = 0x3fb8aa3b
INV2PI = 0x3e22f983

T_OFF = 4096
P0_OFF = 4096 + 512
P1_OFF = P0_OFF + 1152 + 64
ZA_OFF = P1_OFF + 1152
ZB_OFF = ZA_OFF + 256
ZC_OFF = ZB_OFF + 256
DUMMY_OFF = ZC_OFF + 320 + 64

def gen_s(a, st_en=False, opts=()):
    a.c("==== S role ====")
    S = Stamps(a, st_en, base=80)
    S.real(); S.stamp()
    if "noprio" not in opts: a.i("s_setprio 3")
    a.i("s_sub_u32 s4, s2, 256")
    a.i("v_lshrrev_b32 v1, 6, v0")
    a.i("v_and_b32 v2, 63, v0")
    a.i("v_readfirstlane_b32 s8, v1")
    a.i("v_and_b32 v3, 15, v2")
    a.i("v_lshrrev_b32 v4, 4, v2")
    a.i("s_lshl_b32 s4, s4, 2")
    a.i("s_add_u32 s4, s4, s8")
    a.i("s_mul_i32 s9, s8, 20480")
    a.i("s_waitcnt lgkmcnt(0)")
    SL, SA, SCR, SCI, SDT, SDS, SUT, SCF = 48, 52, 56, 60, 64, 68, 72, 76
    srd(a, SL, P_LAR, 0, 163840); srd(a, SA, P_AIM, 0, 163840); srd(a, SCR, P_CR, 0, 163840); srd(a, SCI, P_CI, 0, 163840)
    srd(a, SDT, P_LDT, 0, 1280); srd(a, SDS, P_DSK, 0, 1280)
    srd(a, SUT, P_WS, UT_OFF, UT_SZ); srd(a, SCF, P_WS, CF_OFF, CF_SZ)
    vm = VM(a)
    a.i("s_lshl_b32 s10, s4, 8")
    a.i("v_lshlrev_b32 v5, 1, v2")
    for h in range(2):
        for k, sr in enumerate((SL, SA, SCR, SCI)):
            vm.issue(f"buffer_load_ushort v{8+2*k+h}, v5, s[{sr}:{sr+3}], s10 offen offset:{128*h}", ("p", h, k))
    a.i("s_lshl_b32 s11, s4, 1")
    a.i("v_mov_b32 v6, 0")
    vm.issue(f"buffer_load_ushort v16, v6, s[{SDT}:{SDT+3}], s11 offen", "dt")
    vm.issue(f"buffer_load_ushort v17, v6, s[{SDS}:{SDS+3}], s11 offen", "ds")
    a.i("v_lshlrev_b32 v7, 4, v2")
    a.i("s_lshl_b32 s12, s4, 12")
    for j in range(4):
        a.i(f"s_add_u32 m0, s9, {j*1024}")
        a.i(f"s_add_u32 s13, s12, {j*1024}")
        vm.issue(f"buffer_load_dwordx4 v7, s[{SUT}:{SUT+3}], s13 offen lds", "ur")
    CF = 200
    if "notouch" not in opts:
        srd(a, 48, P_WS, AT_OFF, AT_SZ)
        vm.issue(f"buffer_load_dword v31, v6, s[48:51], s12 offen")
        srd(a, 52, P_DBG, 0, 256)
        vm.issue(f"buffer_load_dword v31, v6, s[52:55], 0 offen sc1")
    WA = 128; RA = 136
    a.i("v_bfe_u32 v5, v2, 1, 3")
    a.i("v_lshlrev_b32 v6, 8, v2")
    a.i(f"s_add_u32 s15, s9, {T_OFF}")
    a.i("v_add_u32 v6, s15, v6")
    for idx in range(8):
        a.i(f"v_xor_b32 v18, {idx}, v5")
        a.i(f"v_lshl_add_u32 v{WA+idx}, v18, 5, v6")
    a.i("v_bfe_u32 v5, v2, 2, 2")
    a.i("v_and_b32 v6, 1, v4")
    a.i("v_lshl_or_b32 v5, v6, 2, v5")
    a.i("v_lshrrev_b32 v6, 1, v4")
    a.i("v_lshlrev_b32 v6, 4, v6")
    a.i("v_lshl_add_u32 v6, v5, 1, v6")
    a.i("v_lshlrev_b32 v6, 8, v6")
    a.i("v_and_b32 v18, 3, v2")
    a.i("v_lshl_add_u32 v6, v18, 3, v6")
    a.i("v_add_u32 v6, s15, v6")
    for idx in range(8):
        a.i(f"v_xor_b32 v18, {idx}, v5")
        a.i(f"v_lshl_add_u32 v{RA+idx}, v18, 5, v6")
    vm.wait("ds")
    for r in range(8, 18): a.i(f"v_lshlrev_b32 v{r}, 16, v{r}")
    a.i(f"v_mul_f32 v16, {LOG2E:#x}, v16")
    a.i("v_exp_f32 v16, v16")
    a.i("v_cvt_pk_bf16_f32 v16, v16, v16")
    a.i("v_and_b32 v16, 0xffff0000, v16")
    a.i("v_max3_f32 v18, abs(v12), abs(v13), abs(v14)")
    a.i("v_max_f32 v18, abs(v15), v18")
    for ror in (8, 4, 2, 1):
        a.i(f"v_max_f32_dpp v18, v18, v18 row_ror:{ror} row_mask:0xf bank_mask:0xf")
    for i, ln in enumerate((0, 16, 32, 48)):
        a.i(f"v_readlane_b32 s{96+i}, v18, {ln}")
    b0 = 96
    a.i(f"s_max_u32 s{b0}, s{b0}, s{b0+1}")
    a.i(f"s_max_u32 s{b0+2}, s{b0+2}, s{b0+3}")
    a.i(f"s_max_u32 s{b0}, s{b0}, s{b0+2}")
    a.i(f"s_lshr_b32 s{b0}, s{b0}, 23")
    a.i(f"s_max_u32 s{b0}, s{b0}, 1")
    a.i(f"s_min_u32 s{b0}, s{b0}, 252")
    a.i(f"s_sub_u32 s{b0+1}, 253, s{b0}")
    a.i(f"s_lshl_b32 s{b0+1}, s{b0+1}, 23")
    a.i(f"s_add_u32 s{b0+2}, s{b0}, 2")
    a.i(f"s_lshl_b32 s{b0+2}, s{b0+2}, 23")
    SNEG = b0+1; SPOS = b0+2
    for r in (12, 13, 14, 15): a.i(f"v_mul_f32 v{r}, s{SNEG}, v{r}")
    a.i(f"v_mul_f32 v19, s{SPOS}, v16")
    KACC = 148
    TB = [32, 160]
    E = {}
    qs = [1, 2, 4, 8, 16, 32, 64, 128, 256, 512, 1024, 2048]
    for i, q in enumerate(qs): E[q] = (96+2*i, 97+2*i)
    SM = {q: 120+i for i, q in enumerate([2, 4, 16, 32, 64, 128, 256, 512])}
    T0, T1, T2, T3 = 20, 21, 22, 23
    AR, AI, BR, BI = 24, 25, 26, 27
    def direct(q):
        re, im = E[q]
        lit = "1.0" if q == 1 else "0x42000000"
        a.i(f"v_mul_f32 v{T0}, {lit}, v28")
        a.i(f"v_mul_f32 v{T1}, {lit}, v29")
        a.i(f"v_exp_f32 v{T0}, v{T0}")
        a.i(f"v_fract_f32 v{T1}, v{T1}")
        a.i(f"v_cos_f32 v{re}, v{T1}")
        a.i(f"v_sin_f32 v{im}, v{T1}")
        a.i(f"v_mul_f32 v{re}, v{re}, v{T0}")
        a.i(f"v_mul_f32 v{im}, v{im}, v{T0}")
    def sq(q):
        r, i = E[q]; r2, i2 = E[2*q]
        a.i(f"v_mul_f32 v{T0}, v{i}, v{i}")
        a.i(f"v_add_f32 v{T1}, v{r}, v{r}")
        a.i(f"v_fma_f32 v{r2}, v{r}, v{r}, -v{T0}")
        a.i(f"v_mul_f32 v{i2}, v{T1}, v{i}")
    def cm(dr, di, ar, ai, br, bi):
        a.i(f"v_mul_f32 v{T0}, v{ai}, v{bi}")
        a.i(f"v_mul_f32 v{T1}, v{ai}, v{br}")
        a.i(f"v_fma_f32 v{dr}, v{ar}, v{br}, v{T0}")
        a.i(f"v_fma_f32 v{di}, -v{ar}, v{bi}, v{T1}")
    def cmul16(dR, dI, R, I, Sreg, conj):
        n1 = "" if conj else " neg_lo:[0,1,0] neg_hi:[0,1,0]"
        n2 = " neg_lo:[0,1] neg_hi:[0,1]" if conj else ""
        a.i(f"v_pk_mul_f16 v{T2}, v{R}, v{Sreg} op_sel:[0,0] op_sel_hi:[1,0]")
        a.i(f"v_pk_mul_f16 v{T3}, v{R}, v{Sreg} op_sel:[0,1] op_sel_hi:[1,1]{n2}")
        a.i(f"v_pk_fma_f16 v{dR}, v{I}, v{Sreg}, v{T2} op_sel:[0,1,0] op_sel_hi:[1,1,1]{n1}")
        a.i(f"v_pk_fma_f16 v{dI}, v{I}, v{Sreg}, v{T3} op_sel:[0,0,0] op_sel_hi:[1,0,1]")
    def grow(PR, PI, base, n0, steps, conj):
        n = n0
        for st in steps:
            for j in range(n):
                cmul16(PR+base+n+j, PI+base+n+j, PR+base+j, PI+base+j, SM[st], conj)
            n *= 2
    FRG = 224
    S.stamp()
    def tables(h):
        XR = TB[h]; XI = XR + 24; YR = XR + 48; YI = XR + 56
        a.c(f"K-gen tables {h}")
        lar, aim, cr, ci = 8+h, 10+h, 12+h, 14+h
        a.i(f"v_mul_f32 v28, {LOG2E:#x}, v{lar}")
        a.i("v_exp_f32 v28, v28")
        a.i("v_mul_f32 v29, v16, v%d" % aim)
        a.i("v_cvt_pk_bf16_f32 v28, v28, v28")
        a.i(f"v_mul_f32 v29, {INV2PI:#x}, v29")
        a.i("v_and_b32 v28, 0xffff0000, v28")
        a.i("v_mul_f32 v28, v16, v28")
        a.i(f"v_mul_f32 v28, {LOG2E ^ 0x80000000:#x}, v28")
        direct(1); direct(32)
        for qa, qb in ((1, 32), (2, 64), (4, 128), (8, 256)): sq(qa); sq(qb)
        sq(512); sq(1024)
        for q, r in SM.items(): a.i(f"v_cvt_pk_f16_f32 v{r}, v{E[q][0]}, v{E[q][1]}")
        a.i(f"v_cvt_pk_f16_f32 v{YR}, 1.0, v{E[8][0]}")
        a.i(f"v_cvt_pk_f16_f32 v{YI}, 0, v{E[8][1]}")
        a.i(f"v_sub_f32 v30, 0, v{ci}")
        cm(AR, AI, cr, 30, E[1][0], E[1][1])
        a.i(f"v_cvt_pk_f16_f32 v{XR}, v{cr}, v{AR}")
        a.i(f"v_cvt_pk_f16_f32 v{XI}, v30, v{AI}")
        for (j0, qa, qb) in ((8, 256, 2), (12, 512, 4), (16, 1024, 128)):
            cm(AR, AI, cr, 30, E[qa][0], E[qa][1])
            cm(BR, BI, AR, AI, E[qb][0], E[qb][1])
            a.i(f"v_cvt_pk_f16_f32 v{XR+j0}, v{AR}, v{BR}")
            a.i(f"v_cvt_pk_f16_f32 v{XI+j0}, v{AI}, v{BI}")
        cm(AR, AI, cr, 30, E[2048][0], E[2048][1])
        a.i(f"v_cvt_pk_f16_f32 v{XR+20}, v{AR}, 0")
        a.i(f"v_cvt_pk_f16_f32 v{XI+20}, v{AI}, 0")
        for j in (21, 22, 23):
            a.i(f"v_mov_b32 v{XR+j}, 0"); a.i(f"v_mov_b32 v{XI+j}, 0")
        grow(YR, YI, 0, 1, (16, 32, 64), False)
        grow(XR, XI, 0, 1, (2, 4, 128), True)
        grow(XR, XI, 8, 1, (4, 128), True)
        grow(XR, XI, 12, 1, (128, 256), True)
        grow(XR, XI, 16, 1, (256, 512), True)
    def writes(h):
        XR = TB[h]; XI = XR + 24; YR = XR + 48; YI = XR + 56
        src = [XR+4*c for c in range(6)] + [XI+4*c for c in range(6)] + [YR, YR+4, YI, YI+4]
        for c in range(16):
            a.i(f"ds_write_b128 v{WA + (c>>1)}, v[{src[c]}:{src[c]+3}] offset:{(c&1)*16}")
    def kmfma(h):
        grp = [(ks, pl) for ks in range(2) for pl in range(2)]
        def rd(i):
            ks, pl = grp[i]
            R = FRG + (i % 2)*16
            for t in range(3):
                idx = pl*3 + t
                for e in range(2):
                    a.i(f"ds_read_b64_tr_b16 v[{R+4*t+2*e}:{R+4*t+2*e+1}], v{RA+idx} offset:{256*e + 8192*ks}")
            for e in range(2):
                a.i(f"ds_read_b64_tr_b16 v[{R+12+2*e}:{R+12+2*e+1}], v{RA+6+pl} offset:{256*e + 8192*ks}")
        rd(0)
        for i in range(4):
            if i + 1 < 4: rd(i + 1)
            a.i(f"s_waitcnt lgkmcnt({8 if i + 1 < 4 else 0})")
            R = FRG + (i % 2)*16
            for t in range(3):
                d = KACC + 4*t
                C = "0" if (h, i) == (0, 0) else f"v[{d}:{d+3}]"
                a.i(f"v_mfma_f32_16x16x32_f16 v[{d}:{d+3}], v[{R+4*t}:{R+4*t+3}], v[{R+12}:{R+15}], {C}")
    tables(0)
    writes(0)
    if "fine" in opts: S.stamp()
    tables(1)
    if "fine" in opts: S.stamp()
    kmfma(0)
    writes(1)
    kmfma(1)
    a.i("s_mov_b32 s14, 4096")
    for j in range(7):
        so = "0" if j < 4 else "s14"
        vm.issue(f"buffer_load_dwordx4 v[{CF+4*j}:{CF+4*j+3}], v7, s[{SCF}:{SCF+3}], {so} offen offset:{(j%4)*1024}", "cf")
    S.stamp()
    a.c("K outputs")
    for r in range(12): a.i(f"v_mul_f32 v{KACC+r}, v19, v{KACC+r}")
    a.i("v_cmp_eq_u32 vcc, 0, v2")
    a.i("v_add_f32 v20, v17, v%d" % KACC)
    a.i(f"v_cndmask_b32 v{KACC}, v{KACC}, v20, vcc")
    a.i("v_mov_b32 v20, 0"); a.i("v_mov_b32 v21, 0"); a.i("v_mov_b32 v22, 0"); a.i("v_mov_b32 v23, 0")
    a.i("v_add_u32 v24, s15, v7")
    for j in range(4): a.i(f"ds_write_b128 v24, v[20:23] offset:{j*1024}")
    K0, K1, K2t = KACC, KACC+4, KACC+8
    a.i(f"v_cvt_pk_bf16_f32 v32, v{K1}, v{K1}")
    a.i(f"v_cvt_pk_bf16_f32 v33, v{K1}, v{K1+1}")
    a.i(f"v_cvt_pk_bf16_f32 v34, v{K1+1}, v{K1+1}")
    a.i("v_lshlrev_b32 v25, 4, v3")
    a.i(f"s_add_u32 s14, s9, {P0_OFF + (512 - 2 + 16)*2}")
    a.i("v_add_u32 v25, s14, v25")
    a.i("v_subrev_u32 v26, 32, v2")
    a.i("v_cmp_gt_u32 vcc, 2, v26")
    a.i("s_and_saveexec_b64 s[6:7], vcc")
    a.i("ds_write2_b32 v25, v32, v32 offset0:0 offset1:1")
    a.i("ds_write2_b32 v25, v33, v34 offset0:2 offset1:3")
    a.i("s_mov_b64 exec, s[6:7]")
    a.i(f"v_cvt_pk_bf16_f32 v32, v{K1}, v{K1}")
    a.i(f"v_cvt_pk_bf16_f32 v33, v{K1+1}, v{K1+2}")
    a.i(f"v_cvt_pk_bf16_f32 v34, v{K1+2}, v{K1+2}")
    a.i(f"v_cvt_pk_bf16_f32 v35, v{K1+3}, v{K1+3}")
    a.i("v_lshlrev_b32 v25, 8, v4")
    a.i("v_lshl_add_u32 v25, v3, 4, v25")
    a.i(f"s_add_u32 s14, s9, {P0_OFF + (256 + 16)*2 - 2}")
    a.i("v_add_u32 v25, s14, v25")
    a.i("v_cmp_gt_u32 vcc, 32, v2")
    a.i("s_and_saveexec_b64 s[6:7], vcc")
    a.i("ds_write_b16 v25, v32")
    a.i("ds_write_b64 v25, v[32:33] offset:2")
    a.i("ds_write_b32 v25, v34 offset:10")
    a.i("ds_write_b16 v25, v35 offset:14")
    a.i("s_mov_b64 exec, s[6:7]")
    a.i(f"v_cvt_pk_bf16_f32 v36, v{K0}, v{K0+1}")
    a.i(f"v_cvt_pk_bf16_f32 v37, v{K0+2}, v{K0+3}")
    a.i("v_lshrrev_b32 v25, 1, v4")
    a.i("v_lshlrev_b32 v25, 8, v25")
    a.i("v_lshl_add_u32 v25, v3, 4, v25")
    a.i("v_and_b32 v26, 1, v4")
    a.i("v_lshl_add_u32 v25, v26, 3, v25")
    a.i(f"s_add_u32 s14, s9, {P0_OFF + 32}")
    a.i("v_add_u32 v25, s14, v25")
    a.i("ds_write_b64 v25, v[36:37]")
    a.i(f"v_cvt_pk_bf16_f32 v32, v{K1}, v{K1+1}")
    a.i(f"v_cvt_pk_bf16_f32 v33, v{K1+2}, v{K1+3}")
    a.i("v_add_u32 v25, 1, v3")
    a.i("v_lshrrev_b32 v25, 1, v25")
    a.i("v_lshl_add_u32 v25, v4, 4, v25")
    a.i("v_subrev_u32 v25, 1, v25")
    a.i("v_sub_u32 v26, 71, v25")
    a.i("v_lshlrev_b32 v26, 2, v26")
    a.i("v_and_b32 v27, 1, v3")
    a.i(f"v_mov_b32 v29, {ZB_OFF}")
    a.i(f"v_mov_b32 v30, {ZA_OFF}")
    a.i("v_cmp_eq_u32 vcc, 1, v27")
    a.i("v_cndmask_b32 v29, v29, v30, vcc")
    a.i("v_add_u32 v26, v26, v29")
    a.i("v_add_u32 v26, s9, v26")
    a.i("v_cmp_le_u32 vcc, 32, v2")
    a.i("s_and_saveexec_b64 s[6:7], vcc")
    a.i("ds_write_b32 v26, v33")
    a.i("v_cmp_le_u32 vcc, 34, v2")
    a.i("s_and_b64 exec, exec, vcc")
    a.i("ds_write_b32 v26, v32 offset:32")
    a.i("s_mov_b64 exec, s[6:7]")
    for r in range(4): a.i(f"v_cvt_pk_bf16_f32 v{32+r}, v{K2t+r}, v{K2t+r}")
    a.i("v_add_u32 v25, 1, v3")
    a.i("v_lshrrev_b32 v25, 1, v25")
    a.i("v_lshl_add_u32 v25, v4, 5, v25")
    a.i("v_sub_u32 v26, 40, v25")
    a.i("v_lshlrev_b32 v26, 2, v26")
    a.i("v_and_b32 v27, 1, v3")
    a.i("v_xor_b32 v27, 1, v27")
    a.i("v_lshl_add_u32 v26, v27, 1, v26")
    a.i(f"s_add_u32 s14, s9, {ZC_OFF}")
    a.i("v_add_u32 v26, s14, v26")
    a.i("v_cmp_gt_u32 vcc, 32, v2")
    a.i("s_and_saveexec_b64 s[6:7], vcc")
    for r in (3, 2, 1): a.i(f"ds_write_b16 v26, v{32+r} offset:{(3-r)*32}")
    a.i("v_cmp_lt_u32 vcc, 0, v2")
    a.i("s_and_b64 exec, exec, vcc")
    a.i("ds_write_b16 v26, v32 offset:96")
    a.i("s_mov_b64 exec, s[6:7]")
    a.i(f"v_mov_b32 v26, {ZB_OFF + 16*4}")
    a.i(f"v_mov_b32 v27, {ZC_OFF + 2}")
    a.i("v_cmp_eq_u32 vcc, 32, v2")
    a.i("v_cndmask_b32 v26, v26, v27, vcc")
    a.i("v_add_u32 v26, s9, v26")
    a.i("v_and_b32 v27, 31, v2")
    a.i("v_cmp_eq_u32 vcc, 0, v27")
    a.i("s_and_saveexec_b64 s[6:7], vcc")
    a.i("ds_write_b16 v26, v32")
    a.i("s_mov_b64 exec, s[6:7]")
    a.i("v_readlane_b32 s5, v32, 0")
    a.i(f"s_add_u32 s13, s9, {P0_OFF}")
    a.i("v_add_u32 v25, s13, v7")
    for rnd in range(2):
        if rnd == 1:
            a.i("v_cmp_gt_u32 vcc, 6, v2")
            a.i("s_and_saveexec_b64 s[6:7], vcc")
        a.i(f"ds_read_b128 v[36:39], v25 offset:{rnd*1024}")
        a.i(f"ds_read_b32 v40, v25 offset:{rnd*1024+16}")
        a.i("s_waitcnt lgkmcnt(0)")
        for i in range(4): a.i(f"v_alignbit_b32 v{44+i}, v{37+i}, v{36+i}, 16")
        a.i(f"ds_write_b128 v25, v[44:47] offset:{rnd*1024 + P1_OFF - P0_OFF}")
        if rnd == 1: a.i("s_mov_b64 exec, s[6:7]")
    S.stamp()
    if "dumpk" in opts:
        SK = 48
        srd(a, SK, P_WS, AT_OFF, AT_SZ)
        a.i("s_waitcnt lgkmcnt(0)")
        a.i("v_add_u32 v24, s15, v7")
        for j in range(4):
            a.i(f"ds_read_b128 v[36:39], v24 offset:{j*1024}")
            a.i("s_waitcnt lgkmcnt(0)")
            a.i(f"s_add_u32 s13, s12, {j*1024}")
            a.i(f"buffer_store_dwordx4 v[36:39], v7, s[{SK}:{SK+3}], s13 offen")
            a.i("s_nop 2")
        a.i("s_waitcnt vmcnt(0)")
        a.i("s_endpgm")
        return
    conv(a, S, vm, opts, st_en)

def conv(a, S, vm, opts, st_en):
    a.c("conv")
    CF = 200
    ACC = 32; AN = 64; FIX = 132; BB = 136; ZT = 152
    DW = [192, 196, 236, 240, 244, 248]; APPA, APPB, APPC = 228, 232, 252
    VB, VAN, VAN2, VZ = 8, 9, 10, 11
    a.i("v_lshlrev_b32 v12, 5, v3")
    a.i("v_lshlrev_b32 v13, 4, v4")
    a.i("v_sub_u32 v12, v13, v12")
    a.i("s_add_u32 s13, s9, 480")
    a.i(f"v_add_u32 v{VB}, s13, v12")
    a.i("v_add_u32 v12, 1, v3")
    a.i("v_lshrrev_b32 v12, 1, v12")
    a.i("v_lshl_add_u32 v12, v4, 2, v12")
    a.i("v_lshlrev_b32 v12, 2, v12")
    a.i("v_and_b32 v13, 1, v3")
    a.i(f"v_mov_b32 v14, {P1_OFF}")
    a.i(f"v_mov_b32 v15, {P0_OFF}")
    a.i("v_cmp_eq_u32 vcc, 1, v13")
    a.i("v_cndmask_b32 v14, v14, v15, vcc")
    a.i("v_add_u32 v12, v12, v14")
    a.i(f"v_add_u32 v{VAN}, s9, v12")
    a.i(f"v_add_u32 v{VAN2}, 1024, v{VAN}")
    a.i("v_lshlrev_b32 v12, 2, v4")
    a.i("v_sub_u32 v12, v12, v3")
    a.i("v_add_u32 v12, 15, v12")
    a.i("v_lshlrev_b32 v12, 2, v12")
    a.i(f"s_add_u32 s13, s9, {ZA_OFF}")
    a.i(f"v_add_u32 v{VZ}, s13, v12")
    zt = {}
    k = 0
    for name, base, deltas, top in (("A", 0, (2,3,4), 4), ("B", 64, (2,3,4), 4), ("C", 128, (4,5,6,7), 7)):
        for dl in deltas:
            r = ZT + 4*k; k += 1; zt[(name, dl)] = r
            o = base + 16*(top - dl)
            a.i(f"ds_read2_b32 v[{r}:{r+1}], v{VZ} offset0:{o} offset1:{o+1}")
            a.i(f"ds_read2_b32 v[{r+2}:{r+3}], v{VZ} offset0:{o+2} offset1:{o+3}")
    vm.wait("cf")
    if "fine" not in opts: S.stamp()
    for i in range(4): a.i(f"v_and_b32 v{FIX+i}, s5, v{CF+24+i}")
    inited = set()
    def accm(J, A, B):
        d = ACC + 4*J
        C = f"v[{d}:{d+3}]" if J in inited else "0"
        inited.add(J)
        a.i(f"v_mfma_f32_16x16x32_bf16 v[{d}:{d+3}], v[{A}:{A+3}], v[{B}:{B+3}], {C}")
    def ldT(kap):
        r = BB + (kap % 2)*8
        a.i(f"ds_read_b128 v[{r}:{r+3}], v{VB} offset:{3584 - 512*kap}")
        a.i(f"ds_read_b128 v[{r+4}:{r+7}], v{VB} offset:{3600 - 512*kap}")
    def ldAN(s):
        r = AN + 4*s
        if s < 16:
            a.i(f"ds_read2_b32 v[{r}:{r+1}], v{VAN} offset0:{16*s} offset1:{16*s+1}")
            a.i(f"ds_read2_b32 v[{r+2}:{r+3}], v{VAN} offset0:{16*s+2} offset1:{16*s+3}")
        else:
            a.i(f"ds_read2_b32 v[{r}:{r+1}], v{VAN2} offset0:0 offset1:1")
            a.i(f"ds_read2_b32 v[{r+2}:{r+3}], v{VAN2} offset0:2 offset1:3")
    ldT(0); ldT(1)
    an_next = 0
    for kap in range(6):
        Ta = BB + (kap % 2)*8; Tb = Ta + 4
        a.i("s_waitcnt lgkmcnt(2)" if kap == 0 else f"s_waitcnt lgkmcnt({pend})")
        w = lambda D, T, c: a.i(f"v_mfma_f32_16x16x32_bf16 v[{D}:{D+3}], v[{T}:{T+3}], v[{CF+4*c}:{CF+4*c+3}], 0")
        w(DW[0], Ta, 0); w(DW[1], Ta, 1); w(DW[2], Tb, 3); w(DW[3], Tb, 4)
        if kap <= 3: w(DW[4], Ta, 2); w(DW[5], Tb, 5)
        if kap <= 3: accm(kap + 4, FIX, Ta)
        pend = 0
        for _ in range(3):
            if an_next < 17: ldAN(an_next); an_next += 1; pend += 2
        if kap + 2 < 6: ldT(kap + 2); pend = 2
        else: pend = 0
        for j in range(4): a.i(f"v_cvt_pk_bf16_f32 v{APPA+j}, v{DW[0]+j}, v{DW[1]+j}")
        for j in range(4): a.i(f"v_cvt_pk_bf16_f32 v{APPB+j}, v{DW[2]+j}, v{DW[3]+j}")
        if kap <= 3:
            for j in range(4): a.i(f"v_cvt_pk_bf16_f32 v{APPC+j}, v{DW[4]+j}, v{DW[5]+j}")
        for dl in (2, 3, 4):
            if kap + dl <= 7:
                accm(kap + dl, APPA, zt[("A", dl)])
                accm(kap + dl, APPB, zt[("B", dl)])
        if kap <= 3:
            for dl in (4, 5, 6, 7):
                if kap + dl <= 7: accm(kap + dl, APPC, zt[("C", dl)])
    while an_next < 17: ldAN(an_next); an_next += 1
    if "fine" not in opts: S.stamp()
    SAT = 48; SDB = 52
    srd(a, SAT, P_WS, AT_OFF, AT_SZ)
    srd(a, SDB, P_DBG, 0, 256)
    a.i("v_lshlrev_b32 v12, 5, v3")
    a.i("v_lshrrev_b32 v13, 1, v4")
    a.i("v_lshl_add_u32 v12, v13, 4, v12")
    a.i("v_and_b32 v13, 1, v4")
    a.i("v_lshl_add_u32 v12, v13, 9, v12")
    def store_pair(Jh, Jl):
        dl = ACC + 4*Jl; dh = ACC + 4*Jh
        r = ZT + 4*(Jl // 2)
        a.i(f"v_cvt_pk_bf16_f32 v{r}, v{dl}, v{dl+1}")
        a.i(f"v_cvt_pk_bf16_f32 v{r+1}, v{dl+2}, v{dl+3}")
        a.i(f"v_cvt_pk_bf16_f32 v{r+2}, v{dh}, v{dh+1}")
        a.i(f"v_cvt_pk_bf16_f32 v{r+3}, v{dh+2}, v{dh+3}")
        a.i(f"v_permlane16_swap_b32 v{r}, v{r+2}")
        a.i(f"v_permlane16_swap_b32 v{r+1}, v{r+3}")
        a.i(f"buffer_store_dwordx4 v[{r}:{r+3}], v12, s[{SAT}:{SAT+3}], s12 offen offset:{512*Jl} sc1")
    taus = list(range(56, -8, -1))
    def ldB(i):
        r = BB + (i % 4)*4
        a.i(f"ds_read_b128 v[{r}:{r+3}], v{VB} offset:{64*(56 - taus[i])}")
    a.i("s_waitcnt lgkmcnt(0)")
    for i in range(3): ldB(i)
    for i, tau in enumerate(taus):
        if i + 3 < len(taus): ldB(i + 3)
        a.i(f"s_waitcnt lgkmcnt({min(3, len(taus) - 1 - i)})")
        B = BB + (i % 4)*4
        for J in range(8):
            s = 8*J - tau
            if 0 <= s <= 16: accm(J, AN + 4*s, B)
        if tau in (32, 16, 0, -7):
            Jh = {32: 7, 16: 5, 0: 3, -7: 1}[tau]
            store_pair(Jh, Jh - 1)
    S.stamp()
    a.i("s_sub_u32 s13, s2, 256")
    a.i("s_mul_i32 s14, s13, 205")
    a.i("s_lshr_b32 s14, s14, 12")
    a.i("s_mul_i32 s15, s14, 12")
    a.i("s_add_u32 s13, s13, s15")
    a.i("v_mov_b32 v13, s13")
    a.i("v_mov_b32 v14, 1")
    a.i("s_waitcnt vmcnt(0)")
    if "atim" in opts: S.stamp()
    a.i("s_barrier")
    lns = a.newlabel("SNS")
    a.i("s_cmp_lg_u32 s8, 0")
    a.i(f"s_cbranch_scc1 {lns}")
    a.i("v_cmp_eq_u32 vcc, 0, v2")
    a.i("s_and_saveexec_b64 s[6:7], vcc")
    a.i(f"buffer_store_byte v14, v13, s[{SDB}:{SDB+3}], 0 offen sc1")
    a.i("s_mov_b64 exec, s[6:7]")
    a.label(lns)
    S.stamp(); S.real()
    S.write(1, vt=14, srd=56)
    a.i("s_endpgm")
```

```python
from common import *

def gen_t(a, opts=(), st_en=False):
    a.c("==== T role ====")
    S = Stamps(a, st_en, base=84)
    S.real(); S.stamp()
    a.i("s_sub_u32 s4, s2, 224")
    a.i("v_lshrrev_b32 v1, 6, v0")
    a.i("v_and_b32 v2, 63, v0")
    a.i("v_readfirstlane_b32 s8, v1")
    a.i("s_waitcnt lgkmcnt(0)")
    SW2, SP, SU, SUT, SCF = 48, 52, 56, 60, 64
    srd(a, SW2, P_W2, 0, 1728*1280)
    srd(a, SP, P_WS, W2P_OFF, W2P_SZ)
    srd(a, SU, P_U, 0, 2048*1280)
    srd(a, SUT, P_WS, UT_OFF, UT_SZ)
    srd(a, SCF, P_WS, CF_OFF, CF_SZ)
    a.i("s_lshl_b32 s5, s4, 3")
    a.i("s_add_u32 s5, s5, s8")
    a.i("v_lshrrev_b32 v3, 3, v2")
    a.i("v_mul_u32_u24 v3, 1280, v3")
    a.i("v_and_b32 v4, 7, v2")
    a.i("v_lshl_add_u32 v10, v4, 4, v3")
    a.i("s_mul_i32 s9, s8, 20480")
    vm = VM(a)
    for i in range(3):
        a.i(f"s_add_u32 s10, s5, {256*i}")
        a.i("s_min_u32 s10, s10, 539")
        a.i("s_mul_i32 s11, s10, 52429")
        a.i(f"s_lshr_b32 s{72+2*i}, s11, 19")
        a.i(f"s_mul_i32 s11, s{72+2*i}, 10")
        a.i(f"s_sub_u32 s{73+2*i}, s10, s11")
        a.i(f"s_mul_i32 s12, s{72+2*i}, 40960")
        a.i(f"s_lshl_b32 s13, s{73+2*i}, 7")
        a.i("s_add_u32 s12, s12, s13")
        for jj in range(4):
            a.i(f"s_add_u32 m0, s9, {i*4096 + jj*1024}")
            vm.issue(f"buffer_load_dwordx4 v10, s[{SW2}:{SW2+3}], s12 offen lds", ("u", i) if jj == 3 else None)
            if jj < 3: a.i("s_add_u32 s12, s12, 10240")
    def ut_issue(i, slot):
        a.i(f"s_add_u32 s10, s8, {8*i}")
        a.i("s_min_u32 s10, s10, 19")
        a.i("s_cmp_ge_u32 s10, 10")
        a.i("s_cselect_b32 s11, 1, 0")
        a.i("s_mul_i32 s12, s11, 10")
        a.i(f"s_sub_u32 s{78+2*i}, s10, s12")
        a.i("s_lshl_b32 s12, s4, 6")
        a.i("s_lshl_b32 s11, s11, 5")
        a.i(f"s_add_u32 s{79+2*i}, s12, s11")
        a.i(f"s_mul_i32 s12, s{79+2*i}, 1280")
        a.i(f"s_lshl_b32 s13, s{78+2*i}, 7")
        a.i("s_add_u32 s12, s12, s13")
        for jj in range(4):
            a.i(f"s_add_u32 m0, s9, {slot*4096 + jj*1024}")
            vm.issue(f"buffer_load_dwordx4 v10, s[{SU}:{SU+3}], s12 offen lds", ("t", i) if jj == 3 else None)
            if jj < 3: a.i("s_add_u32 s12, s12, 10240")
    ut_issue(0, 3); ut_issue(1, 4)
    SPF = 68
    a.i("v_lshlrev_b32 v12, 4, v2")
    a.i("s_lshl_b32 s10, s5, 10")
    for k, pp in enumerate((P_LAR, P_AIM, P_CR, P_CI)):
        srd(a, SPF, pp, 0, 163840)
        vm.issue(f"buffer_load_dwordx4 v[{100+4*k}:{103+4*k}], v12, s[{SPF}:{SPF+3}], s10 offen")
    lcf = a.newlabel("TCF")
    a.i("s_cmp_lg_u32 s5, 0")
    a.i(f"s_cbranch_scc1 {lcf}")
    a.i("v_and_b32 v3, 15, v2")
    a.i("v_lshrrev_b32 v4, 4, v2")
    a.i("v_lshl_add_u32 v3, v4, 3, v3")
    a.i("v_lshlrev_b32 v12, 4, v2")
    a.i("v_mov_b32 v13, 0")
    specs = [(-15, 8, 2), (-15, 12, 1), (-15, 8, 3), (-7, 16, 2), (-7, 20, 1), (-7, 16, 4), None]
    for f, sp in enumerate(specs):
        if sp: off, width, val = sp[0] - sp[1] + sp[2], 2*sp[2]+1, 0x3F80
        else: off, width, val = -18, 2, 0xFFFF
        a.i(f"v_mov_b32 v14, {val:#x}")
        a.i(f"v_mov_b32 v15, {val << 16:#x}")
        for j in range(4):
            a.i(f"v_add_u32 v5, {off + 2*j}, v3")
            a.i(f"v_add_u32 v6, {off + 2*j + 1}, v3")
            a.i(f"v_cmp_gt_u32 vcc, {width}, v5")
            a.i(f"v_cndmask_b32 v7, v13, v14, vcc")
            a.i(f"v_cmp_gt_u32 vcc, {width}, v6")
            a.i(f"v_cndmask_b32 v8, v13, v15, vcc")
            a.i(f"v_or_b32 v{16+j}, v7, v8")
        a.i(f"s_mov_b32 s10, {f*1024}")
        a.i(f"buffer_store_dwordx4 v[16:19], v12, s[{SCF}:{SCF+3}], s10 offen")
        a.i("s_nop 1")
    a.label(lcf)
    vm_extra = None
    a.i("v_lshrrev_b32 v3, 4, v2")
    a.i("v_bfe_u32 v4, v2, 2, 2")
    a.i("v_and_b32 v5, 3, v2")
    a.i("v_lshl_add_u32 v6, v3, 2, v4")
    a.i("v_lshlrev_b32 v6, 7, v6")
    a.i("v_lshl_add_u32 v6, v5, 3, v6")
    a.i("v_add_u32 v11, s9, v6")
    a.i("v_lshlrev_b32 v12, 4, v2")
    a.i("v_lshlrev_b32 v6, 3, v3")
    a.i("v_add_u32 v6, 3, v6")
    a.i("v_sub_u32 v6, v6, v4")
    a.i("v_lshlrev_b32 v6, 7, v6")
    a.i("v_lshl_add_u32 v6, v5, 3, v6")
    a.i("v_add_u32 v13, s9, v6")
    a.i("v_and_b32 v6, 15, v2")
    a.i("v_lshlrev_b32 v6, 6, v6")
    a.i("v_sub_u32 v7, 3, v3")
    a.i("v_lshl_add_u32 v6, v7, 4, v6")
    a.i("v_add_u32 v14, s9, v6")
    a.i("v_add_u32 v15, s9, v12")
    a.i("v_lshrrev_b32 v6, 2, v2")
    a.i("v_lshlrev_b32 v6, 12, v6")
    a.i("v_lshl_add_u32 v9, v5, 4, v6")
    for i in range(3):
        vm.wait(("u", i))
        R = 16 + (i % 2) * 16
        for tt in range(4):
            for e in range(2):
                a.i(f"ds_read_b64_tr_b16 v[{R+4*tt+2*e}:{R+4*tt+2*e+1}], v11 offset:{i*4096 + e*2048 + tt*32}")
        for tt in range(4):
            a.i(f"s_lshl_b32 s10, s{73+2*i}, 2")
            a.i(f"s_add_u32 s10, s10, {tt}")
            a.i("s_mul_i32 s11, s10, 13")
            a.i("s_lshr_b32 s11, s11, 6")
            a.i("s_mul_i32 s12, s11, 5")
            a.i("s_sub_u32 s12, s10, s12")
            a.i("s_mul_i32 s11, s11, 54")
            a.i(f"s_add_u32 s11, s11, s{72+2*i}")
            a.i("s_mul_i32 s11, s11, 5")
            a.i("s_add_u32 s11, s11, s12")
            a.i("s_lshl_b32 s11, s11, 10")
            a.i(f"s_waitcnt lgkmcnt({6-2*tt})")
            vm.issue(f"buffer_store_dwordx4 v[{R+4*tt}:{R+4*tt+3}], v12, s[{SP}:{SP+3}], s11 offen")
        if i == 0: ut_issue(2, 0)
    S.stamp()
    slots = [3, 4, 0]
    for i in range(3):
        sl = slots[i]
        vm.wait(("t", i))
        R = 48 + (i % 2) * 32
        for tt in range(4):
            a.i(f"ds_read_b64_tr_b16 v[{R+4*tt}:{R+4*tt+1}], v13 offset:{sl*4096 + tt*32 + 512}")
            a.i(f"ds_read_b64_tr_b16 v[{R+4*tt+2}:{R+4*tt+3}], v13 offset:{sl*4096 + tt*32}")
        a.i("s_waitcnt lgkmcnt(0)")
        for tt in range(4):
            a.i(f"ds_write_b128 v14, v[{R+4*tt}:{R+4*tt+3}] offset:{sl*4096 + tt*1024}")
        for tt in range(4):
            a.i(f"ds_read_b128 v[{R+16+4*tt}:{R+16+4*tt+3}], v15 offset:{sl*4096 + tt*1024}")
        a.i(f"s_lshl_b32 s10, s{78+2*i}, 18")
        a.i(f"s_lshl_b32 s11, s{79+2*i}, 1")
        a.i("s_sub_u32 s11, 4032, s11")
        a.i("s_add_u32 s10, s10, s11")
        for tt in range(4):
            a.i(f"s_waitcnt lgkmcnt({3-tt})")
            vm.issue(f"buffer_store_dwordx4 v[{R+16+4*tt}:{R+16+4*tt+3}], v9, s[{SUT}:{SUT+3}], s10 offen")
            a.i("s_add_u32 s10, s10, 65536")
    S.stamp()
    if st_en: a.i("s_waitcnt vmcnt(0)")
    S.stamp(); S.real()
    S.write(0, vt=20, srd=48)
    a.i("s_endpgm")
```

```python
from common import *

def gen_g1(a, st_en=False, opts=()):
    a.c("==== G1 role ====")
    S = Stamps(a, st_en)
    S.real(); S.stamp()
    a.i("s_and_b32 s4, s2, 7")
    a.i("s_lshr_b32 s5, s2, 3")
    a.i("s_mul_i32 s6, s5, 37")
    a.i("s_lshr_b32 s6, s6, 8")
    a.i("s_mul_i32 s7, s6, 7")
    a.i("s_sub_u32 s5, s5, s7")
    a.i("s_add_u32 s3, s5, s6")
    a.i("s_and_b32 s7, s4, 1")
    a.i("s_mul_i32 s7, s7, 7")
    a.i("s_add_u32 s5, s5, s7")
    a.i("s_lshr_b32 s4, s4, 1")
    a.i("s_lshl_b32 s4, s4, 2")
    a.i("s_add_u32 s4, s4, s6")
    a.i("v_lshrrev_b32 v1, 6, v0")
    a.i("v_and_b32 v2, 63, v0")
    a.i("v_readfirstlane_b32 s8, v1")
    a.i("v_and_b32 v3, 15, v2")
    a.i("v_lshrrev_b32 v4, 4, v2")
    a.i("s_waitcnt lgkmcnt(0)")
    SX, SW, SB, SH = 48, 52, 56, 60
    XB = 0; WB = 81920; NX = 5; NW = 10
    NST = 20
    lcomp = a.newlabel("G1C")
    a.i("s_cmp_lt_u32 s8, 4")
    a.i(f"s_cbranch_scc1 {lcomp}")
    a.c("G1 loader")
    srd(a, SX, P_U, 0, 2048*1280)
    srd(a, SW, P_W1, 0, 640*3456)
    a.i("s_sub_u32 s8, s8, 4")
    VXD, VXD1, VWD = 10, 11, 12
    a.i("v_lshrrev_b32 v5, 3, v2")
    a.i("v_and_b32 v6, 7, v2")
    a.i("v_xor_b32 v6, v6, v4")
    a.i("s_lshl_b32 s9, s4, 7")
    a.i("s_lshl_b32 s10, s8, 5")
    a.i("s_add_u32 s9, s9, s10")
    a.i("v_add_u32 v5, s9, v5")
    a.i("v_mul_u32_u24 v5, 1280, v5")
    a.i(f"v_lshl_add_u32 v{VXD}, v6, 4, v5")
    a.i("v_xor_b32 v6, 4, v6")
    a.i(f"v_lshl_add_u32 v{VXD1}, v6, 4, v5")
    a.i("v_bfe_u32 v5, v2, 2, 2")
    a.i("s_lshl_b32 s10, s8, 3")
    a.i("v_add_u32 v5, s10, v5")
    a.i("v_mul_u32_u24 v5, 3456, v5")
    a.i("s_lshl_b32 s11, s5, 8")
    a.i("v_add_u32 v5, s11, v5")
    a.i("v_and_b32 v6, 3, v2")
    a.i("s_and_b32 s10, s8, 1")
    a.i("s_lshl_b32 s10, s10, 1")
    a.i("v_xor_b32 v6, s10, v6")
    a.i("v_lshl_add_u32 v6, v4, 2, v6")
    a.i(f"v_lshl_add_u32 v{VWD}, v6, 4, v5")
    a.i("s_lshl_b32 s12, s8, 11")
    a.i("s_lshl_b32 s17, s8, 12")
    vm = VM(a)
    def xdma(m, jj):
        a.i(f"s_add_u32 m0, s17, {XB + (m%NX)*16384 + jj*1024}")
        a.i(f"s_mov_b32 s13, {m*128 + jj*10240}")
        vm.issue(f"buffer_load_dwordx4 v{VXD if jj % 2 == 0 else VXD1}, s[{SX}:{SX+3}], s13 offen lds", ("x", m) if jj == 3 else None)
    def wdma(st, jj):
        a.i(f"s_add_u32 m0, s12, {WB + (st%NW)*8192 + jj*1024}")
        a.i(f"s_mov_b32 s13, {st*110592 + jj*13824}")
        vm.issue(f"buffer_load_dwordx4 v{VWD}, s[{SW}:{SW+3}], s13 offen lds", ("w", st) if jj == 1 else None)
    def pair(m):
        for jj in range(2): wdma(2*m, jj)
        for jj in range(4): xdma(m, jj)
        for jj in range(2): wdma(2*m+1, jj)
    def wait_stage(st):
        k = min(vm.n - vm.tags[("x", st >> 1)], vm.n - vm.tags[("w", st)])
        a.i(f"s_waitcnt vmcnt({k})")
    NPRO = 3
    if "pro5" in opts: NPRO = 5
    if "pro2" in opts: NPRO = 2
    a.i("s_sub_u32 s14, s3, s6")
    a.i("v_lshrrev_b32 v5, 1, v2")
    a.i("v_lshlrev_b32 v5, 2, v5")
    a.i("v_add_u32 v5, s6, v5")
    a.i("v_mul_u32_u24 v5, 3456, v5")
    a.i("v_and_b32 v6, 1, v2")
    a.i("v_lshl_add_u32 v5, v6, 7, v5")
    a.i("v_add_u32 v13, s11, v5")
    a.i("v_and_b32 v6, 31, v2")
    a.i("v_mul_u32_u24 v6, 7, v6")
    a.i("v_add_u32 v6, s14, v6")
    a.i("v_min_u32 v6, 127, v6")
    a.i("s_lshl_b32 s9, s4, 7")
    a.i("v_add_u32 v6, s9, v6")
    a.i("v_mul_u32_u24 v6, 1280, v6")
    a.i("v_lshrrev_b32 v7, 5, v2")
    a.i("v_lshl_add_u32 v14, v7, 7, v6")
    for m in range(NPRO):
        pair(m)
        if m == 1 and "nopf" not in opts:
            a.i("s_add_u32 s9, s8, 1")
            a.i("s_mul_i32 s10, s9, 442368")
            a.i("s_lshl_b32 s9, s9, 8")
            vm.issue(f"buffer_load_dword v20, v13, s[{SW}:{SW+3}], s10 offen")
            vm.issue(f"buffer_load_dword v21, v14, s[{SX}:{SX+3}], s9 offen")
    S.stamp()
    wait_stage(0)
    S.stamp()
    a.i("s_barrier")
    items = []
    for m in range(NPRO, 10):
        items += [("w", 2*m, 0), ("w", 2*m, 1), ("x", m, 0), ("x", m, 1), ("x", m, 2), ("x", m, 3), ("w", 2*m+1, 0), ("w", 2*m+1, 1)]
    def ok(it, st):
        if it[0] == "w": return it[1] - NW <= st
        return 2*(it[1] - NX) + 1 <= st
    SUT = 60
    def ut1():
        srd(a, SUT, P_WS, UT_OFF, UT_SZ)
        a.i("s_lshl_b32 s9, s5, 2")
        a.i("s_add_u32 s9, s9, s8")
        a.i("s_min_u32 s9, s9, 39")
        a.i("s_mul_i32 s10, s9, 26")
        a.i("s_lshr_b32 s10, s10, 8")
        a.i("s_mul_i32 s11, s10, 10")
        a.i("s_sub_u32 s11, s9, s11")
        a.i("s_lshl_b32 s10, s10, 5")
        a.i("s_lshl_b32 s13, s4, 7")
        a.i("s_add_u32 s10, s10, s13")
        a.i("s_lshl_b32 s14, s8, 13")
        a.i(f"s_add_u32 s14, s14, {WB}")
        a.i("v_lshrrev_b32 v5, 3, v2")
        a.i("v_mul_u32_u24 v5, 1280, v5")
        a.i("v_and_b32 v6, 7, v2")
        a.i("v_lshl_add_u32 v5, v6, 4, v5")
        a.i("s_mul_i32 s13, s10, 1280")
        a.i("s_lshl_b32 s15, s11, 7")
        a.i("s_add_u32 s13, s13, s15")
        for jj in range(4):
            a.i(f"s_add_u32 m0, s14, {jj*1024}")
            vm.issue(f"buffer_load_dwordx4 v5, s[{SX}:{SX+3}], s13 offen lds", "ut")
            if jj < 3: a.i("s_add_u32 s13, s13, 10240")
        a.i("v_bfe_u32 v6, v2, 2, 2")
        a.i("v_and_b32 v7, 3, v2")
        a.i("v_lshlrev_b32 v8, 3, v4")
        a.i("v_add_u32 v8, 3, v8")
        a.i("v_sub_u32 v8, v8, v6")
        a.i("v_lshlrev_b32 v8, 7, v8")
        a.i("v_lshl_add_u32 v8, v7, 3, v8")
        a.i("v_add_u32 v8, s14, v8")
        a.i("v_lshlrev_b32 v9, 6, v3")
        a.i("v_sub_u32 v13, 3, v4")
        a.i("v_lshl_add_u32 v9, v13, 4, v9")
        a.i("v_add_u32 v9, s14, v9")
        a.i("v_lshlrev_b32 v13, 4, v2")
        a.i("v_add_u32 v13, s14, v13")
        a.i("v_lshrrev_b32 v14, 2, v2")
        a.i("v_lshlrev_b32 v14, 12, v14")
        a.i("v_lshl_add_u32 v14, v7, 4, v14")
    def ut2():
        vm.wait("ut")
        R = 24
        for tt in range(4):
            a.i(f"ds_read_b64_tr_b16 v[{R+4*tt}:{R+4*tt+1}], v8 offset:{tt*32 + 512}")
            a.i(f"ds_read_b64_tr_b16 v[{R+4*tt+2}:{R+4*tt+3}], v8 offset:{tt*32}")
        a.i("s_waitcnt lgkmcnt(0)")
        for tt in range(4): a.i(f"ds_write_b128 v9, v[{R+4*tt}:{R+4*tt+3}] offset:{4096 + tt*1024}")
        for tt in range(4): a.i(f"ds_read_b128 v[{R+16+4*tt}:{R+16+4*tt+3}], v13 offset:{4096 + tt*1024}")
        a.i("s_lshl_b32 s13, s11, 18")
        a.i("s_lshl_b32 s15, s10, 1")
        a.i("s_sub_u32 s15, 4032, s15")
        a.i("s_add_u32 s13, s13, s15")
        for tt in range(4):
            a.i(f"s_waitcnt lgkmcnt({3-tt})")
            vm.issue(f"buffer_store_dwordx4 v[{R+16+4*tt}:{R+16+4*tt+3}], v14, s[{SUT}:{SUT+3}], s13 offen" + ("" if "nowt" in opts else " sc1"))
            a.i("s_add_u32 s13, s13, 65536")
    for st in range(NST - 1):
        wait_stage(st + 1)
        if "nobar" not in opts or st < 10: a.i("s_barrier")
        if st == 14:
            assert not items
            ut1()
        if st == 17: ut2()
        cnt = 0
        while items and cnt < 4 and ok(items[0], st):
            it = items.pop(0); cnt += 1
            (wdma if it[0] == "w" else xdma)(it[1], it[2])
    assert not items
    S.stamp()
    S.real()
    S.write(0, vt=20)
    a.i("s_endpgm")
    a.label(lcomp)
    a.c("G1 compute")
    srd(a, SB, P_B1, 0, 3456)
    srd(a, SH, P_WS, HP_OFF, HP_SZ)
    VHP, VXR, VXR1, VWE, VWO = 13, 14, 17, 15, 16
    ACC = 24; FR = 88; BIAS = 152
    a.i("s_lshr_b32 s15, s8, 1")
    a.i("s_and_b32 s16, s8, 1")
    a.i("s_lshl_b32 s11, s5, 8")
    a.i("s_lshl_b32 s10, s15, 7")
    a.i("s_add_u32 s10, s10, s11")
    a.i("v_lshlrev_b32 v5, 3, v4")
    a.i("v_add_u32 v5, s10, v5")
    for ft in range(4):
        a.i(f"buffer_load_dwordx2 v[{FR+32+2*ft}:{FR+33+2*ft}], v5, s[{SB}:{SB+3}], 0 offen offset:{32*ft}")
    a.i("v_lshrrev_b32 v6, 1, v3")
    a.i("v_xor_b32 v6, v6, v4")
    a.i("s_lshl_b32 s10, s16, 6")
    a.i("v_add_u32 v5, s10, v3")
    a.i("v_lshlrev_b32 v5, 7, v5")
    a.i(f"v_lshl_add_u32 v{VXR}, v6, 4, v5")
    a.i("v_xor_b32 v6, 4, v6")
    a.i(f"v_lshl_add_u32 v{VXR1}, v6, 4, v5")
    a.i("v_bfe_u32 v5, v2, 2, 2")
    a.i("v_and_b32 v6, 3, v2")
    a.i("v_lshlrev_b32 v7, 11, v4")
    a.i("v_lshl_add_u32 v7, v5, 6, v7")
    a.i("v_lshl_add_u32 v7, v6, 3, v7")
    a.i("s_lshl_b32 s10, s15, 9")
    a.i(f"s_add_u32 s10, s10, {WB}")
    a.i("v_add_u32 v7, s10, v7")
    a.i("v_and_b32 v8, 1, v4")
    a.i(f"v_lshl_add_u32 v{VWE}, v8, 5, v7")
    a.i("v_xor_b32 v8, 1, v8")
    a.i(f"v_lshl_add_u32 v{VWO}, v8, 5, v7")
    a.i(f"v_lshlrev_b32 v{VHP}, 4, v2")
    VXRb, VXR1b, VWEb, VWOb = 18, 19, 22, 23
    a.i(f"v_add_u32 v{VXRb}, 49152, v{VXR}")
    a.i(f"v_add_u32 v{VXR1b}, 49152, v{VXR1}")
    a.i(f"v_add_u32 v{VWEb}, 49152, v{VWE}")
    a.i(f"v_add_u32 v{VWOb}, 49152, v{VWO}")
    a.i("s_waitcnt vmcnt(0)")
    for ft in range(4):
        for h in range(2):
            src = FR+32+2*ft+h
            a.i(f"v_lshlrev_b32 v{BIAS+4*ft+2*h}, 16, v{src}")
            a.i(f"v_and_b32 v{BIAS+4*ft+2*h+1}, 0xffff0000, v{src}")
    lgate = a.newlabel("G1G")
    a.i("s_lshl_b32 s10, s5, 1")
    a.i("s_add_u32 s10, s10, s15")
    a.i("s_cmp_eq_u32 s10, 27")
    a.i(f"s_cbranch_scc1 {lgate}")
    def read_ops(st):
        R = FR + (st % 2) * 32
        ops = []
        ws = st % NW; xs = (st >> 1) % NX
        for ft in range(4):
            if ws < 6: va = VWE if ft % 2 == 0 else VWO
            else: va = VWEb if ft % 2 == 0 else VWOb
            for e in range(2):
                ops.append(f"ds_read_b64_tr_b16 v[{R+16+4*ft+2*e}:{R+16+4*ft+2*e+1}], v{va} offset:{(ws % 6)*8192 + e*1024 + (ft>>1)*256}")
            if xs < 3: vx = VXR if st % 2 == 0 else VXR1
            else: vx = VXRb if st % 2 == 0 else VXR1b
            ops.append(f"ds_read_b128 v[{R+4*ft}:{R+4*ft+3}], v{vx} offset:{(xs % 3)*16384 + ft*2048}")
        return ops
    def mfma_ops(st):
        R = FR + (st % 2) * 32
        ops = []
        for ft in range(4):
            for lt in range(4):
                d = ACC + (ft*4+lt)*4
                C = f"v[{BIAS+4*ft}:{BIAS+4*ft+3}]" if st == 0 else f"v[{d}:{d+3}]"
                ops.append(f"v_mfma_f32_16x16x32_bf16 v[{d}:{d+3}], v[{R+16+4*ft}:{R+16+4*ft+3}], v[{R+4*lt}:{R+4*lt+3}], {C}")
        return ops
    S.n = 2
    S.stamp()
    a.i("s_barrier")
    S.stamp()
    for o in read_ops(0): a.i(o)
    for st in range(NST):
        if st + 1 < NST:
            a.i("s_waitcnt lgkmcnt(0)")
            if "nobar" not in opts or st < 10: a.i("s_barrier")
            if st in (1, 5, 11): S.stamp()
            rd = read_ops(st+1)
            if "noread" in opts: rd = []
            if "xonly" in opts: rd = [r for r in rd if "b128" in r]
            if "wonly" in opts: rd = [r for r in rd if "tr_b16" in r]
        else:
            a.i("s_waitcnt lgkmcnt(0)")
            rd = []
        mf = mfma_ops(st)
        for i, m in enumerate(mf):
            if "burst" not in opts:
                a.i(m)
                if rd: a.i(rd.pop(0))
            else:
                if rd: a.i(rd.pop(0))
                if rd: a.i(rd.pop(0))
                a.i(m)
    S.stamp()
    a.c("G1 epilogue")
    a.i("s_lshl_b32 s14, s4, 1")
    a.i("s_add_u32 s14, s14, s16")
    a.i("s_mul_i32 s14, s14, 54")
    a.i("s_lshl_b32 s10, s5, 2")
    a.i("s_add_u32 s14, s14, s10")
    a.i("s_lshl_b32 s10, s15, 1")
    a.i("s_add_u32 s14, s14, s10")
    a.i("s_lshl_b32 s14, s14, 12")
    a.flush()
    for p in range(2):
        for lt in range(4):
            T = FR + (p*4+lt)*4
            for h in range(2):
                d = ACC + ((2*p+h)*4+lt)*4
                for r in range(4): a.i(f"v_max_f32 v{d+r}, 0, v{d+r}")
                for r in range(0, 4, 2): a.i(f"v_pk_mul_f32 v[{d+r}:{d+r+1}], v[{d+r}:{d+r+1}], v[{d+r}:{d+r+1}]")
                a.i(f"v_cvt_pk_bf16_f32 v{T+2*h}, v{d}, v{d+1}")
                a.i(f"v_cvt_pk_bf16_f32 v{T+2*h+1}, v{d+2}, v{d+3}")
            a.i(f"buffer_store_dwordx4 v[{T}:{T+3}], v{VHP}, s[{SH}:{SH+3}], s14 offen offset:{lt*1024}" + ("" if "nowt" in opts else " sc1"))
        a.i("s_add_u32 s14, s14, 4096")
    S.stamp()
    if st_en: a.i("s_waitcnt vmcnt(0)")
    S.stamp(); S.real()
    S.write(0)
    a.i("s_endpgm")
    a.label(lgate)
    a.c("G1 gate path")
    SGW, SGO = 64, 68
    srd(a, SGW, P_GATE, 0, 1280)
    srd(a, SGO, P_WS, G_OFF, G_SZ)
    GF = 24; XF = 104; GA = 136
    a.i("v_lshlrev_b32 v5, 4, v4")
    for st in range(NST):
        a.i(f"buffer_load_dwordx4 v[{GF+4*st}:{GF+4*st+3}], v5, s[{SGW}:{SGW+3}], 0 offen offset:{64*st}")
    def xreads(st):
        R = XF + (st % 2)*16
        xs = (st >> 1) % NX
        if xs < 3: vx = VXR if st % 2 == 0 else VXR1
        else: vx = VXRb if st % 2 == 0 else VXR1b
        for lt in range(4): a.i(f"ds_read_b128 v[{R+4*lt}:{R+4*lt+3}], v{vx} offset:{(xs % 3)*16384 + lt*2048}")
    a.i("s_waitcnt vmcnt(0)")
    a.i("s_barrier")
    xreads(0)
    for st in range(NST):
        a.i("s_waitcnt lgkmcnt(0)")
        if st + 1 < NST:
            a.i("s_barrier")
            xreads(st + 1)
        R = XF + (st % 2)*16
        for lt in range(4):
            d = GA + 4*lt
            C = "0" if st == 0 else f"v[{d}:{d+3}]"
            a.i(f"v_mfma_f32_16x16x32_bf16 v[{d}:{d+3}], v[{GF+4*st}:{GF+4*st+3}], v[{R+4*lt}:{R+4*lt+3}], {C}")
    a.i("s_lshl_b32 s9, s4, 7")
    a.i("s_lshl_b32 s10, s16, 6")
    a.i("s_add_u32 s9, s9, s10")
    a.i("v_add_u32 v5, s9, v3")
    a.i("v_lshlrev_b32 v5, 2, v5")
    for lt in range(4):
        d = GA + 4*lt
        a.i(f"v_mul_f32 v{d}, 0xbfb8aa3b, v{d}")
        a.i(f"v_exp_f32 v{d}, v{d}")
        a.i(f"v_add_f32 v{d}, 1.0, v{d}")
        a.i(f"v_rcp_f32 v{d}, v{d}")
    a.i("v_cmp_gt_u32 vcc, 16, v2")
    a.i("s_and_saveexec_b64 s[6:7], vcc")
    for lt in range(4):
        a.i(f"buffer_store_dword v{GA+4*lt}, v5, s[{SGO}:{SGO+3}], 0 offen offset:{64*lt}")
    a.i("s_endpgm")
```

```python
from common import *

def gen_g2(a, use_a=False, st_en=False, opts=()):
    a.c("==== G2 role ====")
    S = Stamps(a, st_en, base=76)
    S.real(); S.stamp()
    a.i("s_and_b32 s4, s2, 7")
    a.i("s_lshr_b32 s5, s2, 3")
    a.i("s_lshr_b32 s6, s5, 2")
    a.i("s_and_b32 s5, s5, 3")
    a.i("s_and_b32 s7, s4, 1")
    a.i("s_lshl_b32 s7, s7, 2")
    a.i("s_add_u32 s5, s5, s7")
    a.i("s_lshr_b32 s4, s4, 1")
    a.i("s_lshl_b32 s4, s4, 3")
    a.i("s_add_u32 s4, s4, s6")
    a.i("v_lshrrev_b32 v1, 6, v0")
    a.i("v_and_b32 v2, 63, v0")
    a.i("v_readfirstlane_b32 s8, v1")
    a.i("v_lshlrev_b32 v10, 4, v2")
    a.i("v_add_u32 v11, 4096, v10")
    a.i("s_waitcnt lgkmcnt(0)")
    SH, SP, SO, SB2, SG, SDB, SAT = 48, 52, 56, 60, 64, 68, 72
    srd(a, SH, P_WS, HP_OFF, HP_SZ)
    srd(a, SP, P_WS, W2P_OFF, W2P_SZ)
    a.i("s_mul_i32 s9, s8, 14")
    a.i("s_cmp_eq_u32 s8, 3")
    a.i("s_cselect_b32 s10, 1, 0")
    a.i("s_sub_u32 s9, s9, s10")
    a.i("s_mul_i32 s11, s4, 54")
    a.i("s_add_u32 s11, s11, s9")
    a.i("s_lshl_b32 s11, s11, 12")
    a.i("s_mul_i32 s12, s5, 54")
    a.i("s_add_u32 s12, s12, s9")
    a.i("s_mul_i32 s12, s12, 5120")
    ACC = 16; BUF = 96; NB = 4
    vm = VM(a)
    def issue_ops(step):
        R = BUF + (step % NB) * 36
        ops = []
        for tt in range(5):
            vo = 10 if tt < 4 else 11
            ops.append((f"buffer_load_dwordx4 v[{R+4*tt}:{R+4*tt+3}], v{vo}, s[{SP}:{SP+3}], s12 offen offset:{(tt%4)*1024}", None))
        for t in range(4):
            ops.append((f"buffer_load_dwordx4 v[{R+20+4*t}:{R+20+4*t+3}], v10, s[{SH}:{SH+3}], s11 offen offset:{t*1024}", ("s", step) if t == 3 else None))
        if "wonly2" in opts: ops = ops[:4] + [(ops[4][0], ("s", step))]
        if "honly2" in opts: ops = ops[5:]
        return ops
    def adv():
        a.i("s_add_u32 s11, s11, 4096")
        a.i("s_add_u32 s12, s12, 5120")
    for step in range(NB-1):
        for o, tg in issue_ops(step): vm.issue(o, tg)
        adv()
    srd(a, SO, P_OUT, 0, 2048*1280)
    srd(a, SB2, P_B2, 0, 1280)
    srd(a, SG, P_WS, G_OFF, G_SZ)
    srd(a, SDB, P_WS, FL_OFF, FL_SZ)
    srd(a, SAT, P_WS, AT_OFF, AT_SZ)
    a.i("v_lshrrev_b32 v3, 4, v2")
    a.i("v_and_b32 v4, 15, v2")
    a.i("s_mul_i32 s14, s5, 160")
    a.i("v_lshlrev_b32 v5, 3, v3")
    a.i("v_add_u32 v5, s14, v5")
    B2R = 240; GR = 250
    for tt in range(5):
        vm.issue(f"buffer_load_dwordx2 v[{B2R+2*tt}:{B2R+2*tt+1}], v5, s[{SB2}:{SB2+3}], 0 offen offset:{32*tt}")
    a.i("s_lshl_b32 s15, s4, 6")
    a.i("s_lshl_b32 s14, s8, 4")
    a.i("s_add_u32 s15, s15, s14")
    a.i("v_add_u32 v6, s15, v4")
    a.i("v_lshlrev_b32 v7, 2, v6")
    vm.issue(f"buffer_load_dword v{GR}, v7, s[{SG}:{SG+3}], 0 offen")
    a.i("v_mul_u32_u24 v6, 1280, v6")
    a.i("v_add_u32 v6, v6, v5")
    if "notouch" not in opts:
        vm.issue(f"buffer_load_dword v251, v6, s[{SO}:{SO+3}], 0 offen")
        a.i("s_mul_i32 s13, s5, 327680")
        vm.issue(f"buffer_load_dword v251, v10, s[{SAT}:{SAT+3}], s13 offen")
    llast = a.newlabel("G2L")
    for step in range(14):
        if step == 13:
            a.flush()
            a.i("s_cmp_ge_u32 s8, 2")
            a.i(f"s_cbranch_scc1 {llast}")
        R = BUF + (step % NB) * 36
        vm.wait(("s", step))
        if step in ((0, 1, 4, 8) if "w3" not in opts else (8,)): S.stamp()
        ld = issue_ops(step + NB - 1) if step + NB - 1 < 14 else []
        if "ldmix" not in opts:
            nld = len(ld)
            while ld:
                o, tg = ld.pop(0); vm.issue(o, tg)
        i = 0
        for tt in range(5):
            for t in range(4):
                d = ACC + (tt*4+t)*4
                C = "0" if step == 0 else f"v[{d}:{d+3}]"
                a.i(f"v_mfma_f32_16x16x32_bf16 v[{d}:{d+3}], v[{R+4*tt}:{R+4*tt+3}], v[{R+20+4*t}:{R+20+4*t+3}], {C}")
                if i % 2 == 1 and ld:
                    o, tg = ld.pop(0); vm.issue(o, tg)
                i += 1
        if step + NB - 1 < 14: adv()
    a.label(llast)
    a.flush()
    S.stamp()
    a.c("G2 epilogue: cross-wave reduction")
    a.i("s_mul_i32 s13, s8, 15360")
    a.i("v_add_u32 v12, s13, v10")
    for t in range(4):
        lsk = a.newlabel("G2S")
        a.i(f"s_cmp_eq_u32 s8, {t}")
        a.i(f"s_cbranch_scc1 {lsk}")
        a.i(f"s_cmp_lt_u32 s8, {t}")
        a.i(f"s_cselect_b32 s14, 5120, 0")
        a.i(f"s_sub_u32 s14, {t*5120}, s14")
        a.i("v_add_u32 v13, s14, v12")
        for tt in range(5):
            d = ACC + (tt*4+t)*4
            a.i(f"ds_write_b128 v13, v[{d}:{d+3}] offset:{tt*1024}")
        a.label(lsk)
    AR = BUF + 72
    ABASE = 61440
    if use_a:
        lna = a.newlabel("G2NA")
        a.i("s_cmp_lg_u32 s8, 3")
        a.i(f"s_cbranch_scc1 {lna}")
        a.i("s_mul_i32 s13, s5, 2560")
        a.i("v_min_u32 v7, 19, v2")
        a.i("v_lshlrev_b32 v7, 7, v7")
        a.i("v_add_u32 v7, s13, v7")
        a.i("v_mov_b32 v9, 1")
        lp = a.newlabel("G2POLL"); ld = a.newlabel("G2RDY")
        a.i("s_mov_b32 s14, 0")
        a.label(lp)
        a.i(f"buffer_load_dword v8, v7, s[{SDB}:{SDB+3}], 0 offen sc1")
        a.i("s_waitcnt vmcnt(0)")
        a.i("v_cmp_ne_u32 vcc, v8, v9")
        a.i("s_nop 4")
        a.i(f"s_cbranch_vccz {ld}")
        a.i("s_add_u32 s14, s14, 1")
        a.i("s_cmp_ge_u32 s14, 4096")
        a.i(f"s_cbranch_scc1 {ld}")
        a.i("s_sleep 8")
        a.i(f"s_branch {lp}")
        a.label(ld)
        if "w3" in opts:
            S.stamp()
            a.i(f"v_mov_b32 v9, s14")
            a.i(f"v_readfirstlane_b32 s{S.base+2*S.n}, v9"); S.n += 1
        a.i("v_lshrrev_b32 v7, 3, v2")
        a.i("v_lshlrev_b32 v8, 12, v7")
        a.i("v_and_b32 v9, 7, v2")
        a.i("v_lshl_add_u32 v8, v9, 4, v8")
        a.i("s_mul_i32 s13, s5, 327680")
        a.i("s_lshl_b32 s14, s4, 7")
        a.i("s_add_u32 s13, s13, s14")
        a.i("v_mul_u32_u24 v7, 160, v7")
        a.i("v_lshl_add_u32 v7, v9, 4, v7")
        a.i(f"v_add_u32 v7, {ABASE}, v7")
        for kk in range(10):
            a.i(f"buffer_load_dwordx4 v[{AR+4*kk}:{AR+4*kk+3}], v8, s[{SAT}:{SAT+3}], s13 offen sc1")
            a.i("s_add_u32 s13, s13, 32768")
        for kk in range(10):
            a.i(f"s_waitcnt vmcnt({9-kk})")
            a.i(f"ds_write_b128 v7, v[{AR+4*kk}:{AR+4*kk+3}] offset:{kk*1280}")
        if "w3" in opts: S.stamp()
        a.label(lna)
        a.i("s_waitcnt vmcnt(0)")
        if "w3" not in opts: S.stamp()
    else:
        a.i("s_waitcnt vmcnt(0)")
    a.i("s_waitcnt lgkmcnt(0)")
    a.i("s_barrier")
    S.stamp()
    OWN = BUF
    for t in range(4):
        lsk = a.newlabel("G2M")
        a.i(f"s_cmp_lg_u32 s8, {t}")
        a.i(f"s_cbranch_scc1 {lsk}")
        for tt in range(5):
            d = ACC + (tt*4+t)*4
            for r in range(0, 4, 2): a.i(f"v_pk_add_f32 v[{OWN+4*tt+r}:{OWN+4*tt+r+1}], v[{d+r}:{d+r+1}], 0")
        a.label(lsk)
    RD = ACC
    for k in range(1, 4):
        a.i(f"s_add_u32 s13, s8, {k}")
        a.i("s_and_b32 s13, s13, 3")
        a.i("s_cmp_lt_u32 s8, s13")
        a.i("s_cselect_b32 s14, 0, 1")
        a.i("s_sub_u32 s14, s8, s14")
        a.i("s_mul_i32 s13, s13, 15360")
        a.i("s_mul_i32 s14, s14, 5120")
        a.i("s_add_u32 s13, s13, s14")
        a.i(f"v_add_u32 v{12+k}, s13, v10")
    a.flush()
    for k in range(1, 4):
        for tt in range(5):
            r = RD + ((k-1)*5+tt)*4
            a.i(f"ds_read_b128 v[{r}:{r+3}], v{12+k} offset:{tt*1024}")
    if use_a:
        a.i("v_bfe_u32 v7, v2, 2, 2")
        a.i("v_lshl_add_u32 v7, v3, 2, v7")
        a.i("v_mul_u32_u24 v7, 160, v7")
        a.i("v_and_b32 v8, 3, v2")
        a.i("v_lshl_add_u32 v7, v8, 3, v7")
        a.i("s_lshl_b32 s14, s8, 5")
        a.i(f"s_add_u32 s14, s14, {ABASE}")
        a.i("v_add_u32 v7, s14, v7")
        for tt in range(5): a.i(f"ds_read_b64_tr_b16 v[{AR+16+2*tt}:{AR+16+2*tt+1}], v7 offset:{tt*2560}")
    na = 5 if use_a else 0
    for k in range(1, 4):
        a.i(f"s_waitcnt lgkmcnt({min(15, (3-k)*5 + na)})")
        for tt in range(5):
            r = RD + ((k-1)*5+tt)*4
            for j in range(0, 4, 2):
                a.i(f"v_pk_add_f32 v[{OWN+4*tt+j}:{OWN+4*tt+j+1}], v[{OWN+4*tt+j}:{OWN+4*tt+j+1}], v[{r+j}:{r+j+1}]")
    a.i("s_waitcnt lgkmcnt(0)")
    WF = BUF + 40
    for tt in range(5):
        o = OWN + 4*tt
        for h in range(2):
            a.i(f"v_lshlrev_b32 v8, 16, v{B2R+2*tt+h}")
            a.i(f"v_and_b32 v9, 0xffff0000, v{B2R+2*tt+h}")
            a.i(f"v_add_f32 v{o+2*h}, v{o+2*h}, v8")
            a.i(f"v_add_f32 v{o+2*h+1}, v{o+2*h+1}, v9")
            if use_a:
                a.i(f"v_lshlrev_b32 v8, 16, v{AR+16+2*tt+h}")
                a.i(f"v_and_b32 v9, 0xffff0000, v{AR+16+2*tt+h}")
                a.i(f"v_sub_f32 v8, v8, v{o+2*h}")
                a.i(f"v_sub_f32 v9, v9, v{o+2*h+1}")
                a.i(f"v_fmac_f32 v{o+2*h}, v{GR}, v8")
                a.i(f"v_fmac_f32 v{o+2*h+1}, v{GR}, v9")
        a.i(f"v_cvt_pk_bf16_f32 v{WF+2*tt}, v{o}, v{o+1}")
        a.i(f"v_cvt_pk_bf16_f32 v{WF+2*tt+1}, v{o+2}, v{o+3}")
        a.i(f"buffer_store_dwordx2 v[{WF+2*tt}:{WF+2*tt+1}], v6, s[{SO}:{SO+3}], 0 offen offset:{32*tt}")
    S.stamp()
    S.real()
    if st_en: a.i("s_waitcnt vmcnt(0)")
    S.write(1, srd=48)
    a.i("s_endpgm")
```

```python
from common import *

LOG2E = 0x3fb8aa3b
INV2PI = 0x3e22f983

T_OFF = 4096
P0_OFF = 4096 + 512
P1_OFF = P0_OFF + 1152 + 64
ZA_OFF = P1_OFF + 1152
ZB_OFF = ZA_OFF + 256
ZC_OFF = ZB_OFF + 256
DUMMY_OFF = ZC_OFF + 320 + 64

def gen_s(a, st_en=False, opts=()):
    a.c("==== S role ====")
    S = Stamps(a, st_en, base=80)
    S.real(); S.stamp()
    if "noprio" not in opts: a.i("s_setprio 3")
    a.i("s_sub_u32 s4, s2, 256")
    a.i("v_lshrrev_b32 v1, 6, v0")
    a.i("v_and_b32 v2, 63, v0")
    a.i("v_readfirstlane_b32 s8, v1")
    a.i("v_and_b32 v3, 15, v2")
    a.i("v_lshrrev_b32 v4, 4, v2")
    a.i("s_lshl_b32 s4, s4, 2")
    a.i("s_add_u32 s4, s4, s8")
    a.i("s_mul_i32 s9, s8, 20480")
    a.i("s_waitcnt lgkmcnt(0)")
    SL, SA, SCR, SCI, SDT, SDS, SUT, SCF = 48, 52, 56, 60, 64, 68, 72, 76
    srd(a, SL, P_LAR, 0, 163840); srd(a, SA, P_AIM, 0, 163840); srd(a, SCR, P_CR, 0, 163840); srd(a, SCI, P_CI, 0, 163840)
    srd(a, SDT, P_LDT, 0, 1280); srd(a, SDS, P_DSK, 0, 1280)
    srd(a, SUT, P_WS, UT_OFF, UT_SZ); srd(a, SCF, P_WS, CF_OFF, CF_SZ)
    vm = VM(a)
    a.i("s_lshl_b32 s10, s4, 8")
    a.i("v_lshlrev_b32 v5, 1, v2")
    for h in range(2):
        for k, sr in enumerate((SL, SA, SCR, SCI)):
            vm.issue(f"buffer_load_ushort v{8+2*k+h}, v5, s[{sr}:{sr+3}], s10 offen offset:{128*h}", ("p", h, k))
    a.i("s_lshl_b32 s11, s4, 1")
    a.i("v_mov_b32 v6, 0")
    vm.issue(f"buffer_load_ushort v16, v6, s[{SDT}:{SDT+3}], s11 offen", "dt")
    vm.issue(f"buffer_load_ushort v17, v6, s[{SDS}:{SDS+3}], s11 offen", "ds")
    a.i("v_lshlrev_b32 v7, 4, v2")
    a.i("s_lshl_b32 s12, s4, 12")
    for j in range(4):
        a.i(f"s_add_u32 m0, s9, {j*1024}")
        a.i(f"s_add_u32 s13, s12, {j*1024}")
        vm.issue(f"buffer_load_dwordx4 v7, s[{SUT}:{SUT+3}], s13 offen lds", "ur")
    CF = 200
    if "notouch" not in opts:
        srd(a, 48, P_WS, AT_OFF, AT_SZ)
        vm.issue(f"buffer_load_dword v31, v6, s[48:51], s12 offen")
    WA = 128; RA = 129
    a.i(f"s_add_u32 s15, s9, {T_OFF}")
    a.i("v_mul_u32_u24 v6, 240, v2")
    a.i(f"v_add_u32 v{WA}, s15, v6")
    a.i("v_bfe_u32 v5, v2, 2, 2")
    a.i("v_and_b32 v6, 1, v4")
    a.i("v_lshl_or_b32 v5, v6, 2, v5")
    a.i("v_lshrrev_b32 v6, 1, v4")
    a.i("v_lshlrev_b32 v6, 4, v6")
    a.i("v_lshl_add_u32 v6, v5, 1, v6")
    a.i("v_mul_u32_u24 v6, 240, v6")
    a.i("v_and_b32 v18, 3, v2")
    a.i("v_lshl_add_u32 v6, v18, 3, v6")
    a.i(f"v_add_u32 v{RA}, s15, v6")
    vm.wait("ds")
    for r in range(8, 18): a.i(f"v_lshlrev_b32 v{r}, 16, v{r}")
    a.i(f"v_mul_f32 v16, {LOG2E:#x}, v16")
    a.i("v_exp_f32 v16, v16")
    a.i("v_cvt_pk_bf16_f32 v16, v16, v16")
    a.i("v_and_b32 v16, 0xffff0000, v16")
    a.i("v_max3_f32 v18, abs(v12), abs(v13), abs(v14)")
    a.i("v_max_f32 v18, abs(v15), v18")
    for ror in (8, 4, 2, 1):
        a.i(f"v_max_f32_dpp v18, v18, v18 row_ror:{ror} row_mask:0xf bank_mask:0xf")
    for i, ln in enumerate((0, 16, 32, 48)):
        a.i(f"v_readlane_b32 s{96+i}, v18, {ln}")
    b0 = 96
    a.i(f"s_max_u32 s{b0}, s{b0}, s{b0+1}")
    a.i(f"s_max_u32 s{b0+2}, s{b0+2}, s{b0+3}")
    a.i(f"s_max_u32 s{b0}, s{b0}, s{b0+2}")
    a.i(f"s_lshr_b32 s{b0}, s{b0}, 23")
    a.i(f"s_max_u32 s{b0}, s{b0}, 1")
    a.i(f"s_min_u32 s{b0}, s{b0}, 252")
    a.i(f"s_sub_u32 s{b0+1}, 253, s{b0}")
    a.i(f"s_lshl_b32 s{b0+1}, s{b0+1}, 23")
    a.i(f"s_add_u32 s{b0+2}, s{b0}, 2")
    a.i(f"s_lshl_b32 s{b0+2}, s{b0+2}, 23")
    SNEG = b0+1; SPOS = b0+2
    for r in (12, 13, 14, 15): a.i(f"v_mul_f32 v{r}, s{SNEG}, v{r}")
    a.i(f"v_mul_f32 v19, s{SPOS}, v16")
    KACC = 148
    TB = [32, 160]
    E = {}
    qs = [1, 2, 4, 8, 16, 32, 64, 128, 256, 512, 1024, 2048]
    for i, q in enumerate(qs): E[q] = (96+2*i, 97+2*i)
    SM = {q: 120+i for i, q in enumerate([2, 4, 16, 32, 64, 128, 256, 512])}
    T0, T1, T2, T3 = 20, 21, 22, 23
    AR, AI, BR, BI = 24, 25, 26, 27
    def direct(q):
        re, im = E[q]
        lit = "1.0" if q == 1 else "0x42000000"
        a.i(f"v_mul_f32 v{T0}, {lit}, v28")
        a.i(f"v_mul_f32 v{T1}, {lit}, v29")
        a.i(f"v_exp_f32 v{T0}, v{T0}")
        a.i(f"v_fract_f32 v{T1}, v{T1}")
        a.i(f"v_cos_f32 v{re}, v{T1}")
        a.i(f"v_sin_f32 v{im}, v{T1}")
        a.i(f"v_mul_f32 v{re}, v{re}, v{T0}")
        a.i(f"v_mul_f32 v{im}, v{im}, v{T0}")
    def sq(q):
        r, i = E[q]; r2, i2 = E[2*q]
        a.i(f"v_mul_f32 v{T0}, v{i}, v{i}")
        a.i(f"v_add_f32 v{T1}, v{r}, v{r}")
        a.i(f"v_fma_f32 v{r2}, v{r}, v{r}, -v{T0}")
        a.i(f"v_mul_f32 v{i2}, v{T1}, v{i}")
    def cm(dr, di, ar, ai, br, bi):
        a.i(f"v_mul_f32 v{T0}, v{ai}, v{bi}")
        a.i(f"v_mul_f32 v{T1}, v{ai}, v{br}")
        a.i(f"v_fma_f32 v{dr}, v{ar}, v{br}, v{T0}")
        a.i(f"v_fma_f32 v{di}, -v{ar}, v{bi}, v{T1}")
    def cmul16(dR, dI, R, I, Sreg, conj):
        n1 = "" if conj else " neg_lo:[0,1,0] neg_hi:[0,1,0]"
        n2 = " neg_lo:[0,1] neg_hi:[0,1]" if conj else ""
        a.i(f"v_pk_mul_f16 v{T2}, v{R}, v{Sreg} op_sel:[0,0] op_sel_hi:[1,0]")
        a.i(f"v_pk_mul_f16 v{T3}, v{R}, v{Sreg} op_sel:[0,1] op_sel_hi:[1,1]{n2}")
        a.i(f"v_pk_fma_f16 v{dR}, v{I}, v{Sreg}, v{T2} op_sel:[0,1,0] op_sel_hi:[1,1,1]{n1}")
        a.i(f"v_pk_fma_f16 v{dI}, v{I}, v{Sreg}, v{T3} op_sel:[0,0,0] op_sel_hi:[1,0,1]")
    def grow(PR, PI, base, n0, steps, conj):
        n = n0
        for st in steps:
            for j in range(n):
                cmul16(PR+base+n+j, PI+base+n+j, PR+base+j, PI+base+j, SM[st], conj)
            n *= 2
    FRG = 224
    S.stamp()
    def tables(h):
        XR = TB[h]; XI = XR + 20; YR = XR + 40; YI = XR + 48
        a.c(f"K-gen tables {h}")
        lar, aim, cr, ci = 8+h, 10+h, 12+h, 14+h
        a.i(f"v_mul_f32 v28, {LOG2E:#x}, v{lar}")
        a.i("v_exp_f32 v28, v28")
        a.i("v_mul_f32 v29, v16, v%d" % aim)
        a.i("v_cvt_pk_bf16_f32 v28, v28, v28")
        a.i(f"v_mul_f32 v29, {INV2PI:#x}, v29")
        a.i("v_and_b32 v28, 0xffff0000, v28")
        a.i("v_mul_f32 v28, v16, v28")
        a.i(f"v_mul_f32 v28, {LOG2E ^ 0x80000000:#x}, v28")
        direct(1); direct(32)
        for qa, qb in ((1, 32), (2, 64), (4, 128), (8, 256)): sq(qa); sq(qb)
        sq(512); sq(1024)
        for q, r in SM.items(): a.i(f"v_cvt_pk_f16_f32 v{r}, v{E[q][0]}, v{E[q][1]}")
        a.i(f"v_cvt_pk_f16_f32 v{YR}, 1.0, v{E[8][0]}")
        a.i(f"v_cvt_pk_f16_f32 v{YI}, 0, v{E[8][1]}")
        a.i(f"v_sub_f32 v30, 0, v{ci}")
        cm(AR, AI, cr, 30, E[1][0], E[1][1])
        a.i(f"v_cvt_pk_f16_f32 v{XR}, v{cr}, v{AR}")
        a.i(f"v_cvt_pk_f16_f32 v{XI}, v30, v{AI}")
        for (j0, qa, qb) in ((8, 256, 2), (12, 512, 4), (16, 1024, 128)):
            cm(AR, AI, cr, 30, E[qa][0], E[qa][1])
            cm(BR, BI, AR, AI, E[qb][0], E[qb][1])
            a.i(f"v_cvt_pk_f16_f32 v{XR+j0}, v{AR}, v{BR}")
            a.i(f"v_cvt_pk_f16_f32 v{XI+j0}, v{AI}, v{BI}")
        cm(AR, AI, cr, 30, E[2048][0], E[2048][1])
        if h == 0: a.i(f"v_mov_b32 v144, v{AR}")
        else: a.i(f"v_add_f32 v144, v144, v{AR}")
        grow(YR, YI, 0, 1, (16, 32, 64), False)
        grow(XR, XI, 0, 1, (2, 4, 128), True)
        grow(XR, XI, 8, 1, (4, 128), True)
        grow(XR, XI, 12, 1, (128, 256), True)
        grow(XR, XI, 16, 1, (256, 512), True)
    def writes(h):
        XR = TB[h]
        for c in range(14):
            a.i(f"ds_write_b128 v{WA}, v[{XR+4*c}:{XR+4*c+3}] offset:{16*c}")
    def kmfma(h):
        grp = [(ks, pl) for ks in range(2) for pl in range(2)]
        def rd(i):
            ks, pl = grp[i]
            R = FRG + (i % 2)*16
            for t in range(3):
                for e in range(2):
                    a.i(f"ds_read_b64_tr_b16 v[{R+4*t+2*e}:{R+4*t+2*e+1}], v{RA} offset:{80*pl + 32*t + 240*e + 7680*ks}")
            for e in range(2):
                a.i(f"ds_read_b64_tr_b16 v[{R+12+2*e}:{R+12+2*e+1}], v{RA} offset:{160 + 32*pl + 240*e + 7680*ks}")
        rd(0)
        for i in range(4):
            if i + 1 < 4: rd(i + 1)
            a.i(f"s_waitcnt lgkmcnt({8 if i + 1 < 4 else 0})")
            R = FRG + (i % 2)*16
            for t in range(3):
                d = KACC + 4*t
                C = "0" if (h, i) == (0, 0) else f"v[{d}:{d+3}]"
                a.i(f"v_mfma_f32_16x16x32_f16 v[{d}:{d+3}], v[{R+4*t}:{R+4*t+3}], v[{R+12}:{R+15}], {C}")
    tables(0)
    writes(0)
    if "fine" in opts: S.stamp()
    tables(1)
    if "fine" in opts: S.stamp()
    kmfma(0)
    writes(1)
    kmfma(1)
    a.i("s_mov_b32 s14, 4096")
    for j in range(7):
        so = "0" if j < 4 else "s14"
        vm.issue(f"buffer_load_dwordx4 v[{CF+4*j}:{CF+4*j+3}], v7, s[{SCF}:{SCF+3}], {so} offen offset:{(j%4)*1024}", "cf")
    S.stamp()
    a.c("K outputs")
    for ror in (8, 4, 2, 1):
        a.i(f"v_add_f32_dpp v144, v144, v144 row_ror:{ror} row_mask:0xf bank_mask:0xf")
    for i, ln in enumerate((0, 16, 32, 48)): a.i(f"v_readlane_b32 s{96+i}, v144, {ln}")
    a.i("v_mov_b32 v145, s96")
    a.i("v_add_f32 v145, s97, v145")
    a.i("v_add_f32 v145, s98, v145")
    a.i("v_add_f32 v145, s99, v145")
    for r in range(12): a.i(f"v_mul_f32 v{KACC+r}, v19, v{KACC+r}")
    a.i("v_mul_f32 v145, v19, v145")
    a.i("v_cvt_pk_bf16_f32 v145, v145, v145")
    a.i("v_cmp_eq_u32 vcc, 0, v2")
    a.i("v_add_f32 v20, v17, v%d" % KACC)
    a.i(f"v_cndmask_b32 v{KACC}, v{KACC}, v20, vcc")
    a.i("v_mov_b32 v20, 0"); a.i("v_mov_b32 v21, 0"); a.i("v_mov_b32 v22, 0"); a.i("v_mov_b32 v23, 0")
    a.i("v_add_u32 v24, s15, v7")
    for j in range(4): a.i(f"ds_write_b128 v24, v[20:23] offset:{j*1024}")
    K0, K1, K2t = KACC, KACC+4, KACC+8
    a.i(f"v_cvt_pk_bf16_f32 v32, v{K1}, v{K1}")
    a.i(f"v_cvt_pk_bf16_f32 v33, v{K1}, v{K1+1}")
    a.i(f"v_cvt_pk_bf16_f32 v34, v{K1+1}, v{K1+1}")
    a.i("v_lshlrev_b32 v25, 4, v3")
    a.i(f"s_add_u32 s14, s9, {P0_OFF + (512 - 2 + 16)*2}")
    a.i("v_add_u32 v25, s14, v25")
    a.i("v_subrev_u32 v26, 32, v2")
    a.i("v_cmp_gt_u32 vcc, 2, v26")
    a.i("s_and_saveexec_b64 s[6:7], vcc")
    a.i("ds_write2_b32 v25, v32, v32 offset0:0 offset1:1")
    a.i("ds_write2_b32 v25, v33, v34 offset0:2 offset1:3")
    a.i("s_mov_b64 exec, s[6:7]")
    a.i(f"v_cvt_pk_bf16_f32 v32, v{K1}, v{K1}")
    a.i(f"v_cvt_pk_bf16_f32 v33, v{K1+1}, v{K1+2}")
    a.i(f"v_cvt_pk_bf16_f32 v34, v{K1+2}, v{K1+2}")
    a.i(f"v_cvt_pk_bf16_f32 v35, v{K1+3}, v{K1+3}")
    a.i("v_lshlrev_b32 v25, 8, v4")
    a.i("v_lshl_add_u32 v25, v3, 4, v25")
    a.i(f"s_add_u32 s14, s9, {P0_OFF + (256 + 16)*2 - 2}")
    a.i("v_add_u32 v25, s14, v25")
    a.i("v_cmp_gt_u32 vcc, 32, v2")
    a.i("s_and_saveexec_b64 s[6:7], vcc")
    a.i("ds_write_b16 v25, v32")
    a.i("ds_write_b64 v25, v[32:33] offset:2")
    a.i("ds_write_b32 v25, v34 offset:10")
    a.i("ds_write_b16 v25, v35 offset:14")
    a.i("s_mov_b64 exec, s[6:7]")
    a.i(f"v_cvt_pk_bf16_f32 v36, v{K0}, v{K0+1}")
    a.i(f"v_cvt_pk_bf16_f32 v37, v{K0+2}, v{K0+3}")
    a.i("v_lshrrev_b32 v25, 1, v4")
    a.i("v_lshlrev_b32 v25, 8, v25")
    a.i("v_lshl_add_u32 v25, v3, 4, v25")
    a.i("v_and_b32 v26, 1, v4")
    a.i("v_lshl_add_u32 v25, v26, 3, v25")
    a.i(f"s_add_u32 s14, s9, {P0_OFF + 32}")
    a.i("v_add_u32 v25, s14, v25")
    a.i("ds_write_b64 v25, v[36:37]")
    a.i(f"v_cvt_pk_bf16_f32 v32, v{K1}, v{K1+1}")
    a.i(f"v_cvt_pk_bf16_f32 v33, v{K1+2}, v{K1+3}")
    a.i("v_add_u32 v25, 1, v3")
    a.i("v_lshrrev_b32 v25, 1, v25")
    a.i("v_lshl_add_u32 v25, v4, 4, v25")
    a.i("v_subrev_u32 v25, 1, v25")
    a.i("v_sub_u32 v26, 71, v25")
    a.i("v_lshlrev_b32 v26, 2, v26")
    a.i("v_and_b32 v27, 1, v3")
    a.i(f"v_mov_b32 v29, {ZB_OFF}")
    a.i(f"v_mov_b32 v30, {ZA_OFF}")
    a.i("v_cmp_eq_u32 vcc, 1, v27")
    a.i("v_cndmask_b32 v29, v29, v30, vcc")
    a.i("v_add_u32 v26, v26, v29")
    a.i("v_add_u32 v26, s9, v26")
    a.i("v_cmp_le_u32 vcc, 32, v2")
    a.i("s_and_saveexec_b64 s[6:7], vcc")
    a.i("ds_write_b32 v26, v33")
    a.i("v_cmp_le_u32 vcc, 34, v2")
    a.i("s_and_b64 exec, exec, vcc")
    a.i("ds_write_b32 v26, v32 offset:32")
    a.i("s_mov_b64 exec, s[6:7]")
    for r in range(4): a.i(f"v_cvt_pk_bf16_f32 v{32+r}, v{K2t+r}, v{K2t+r}")
    a.i("v_add_u32 v25, 1, v3")
    a.i("v_lshrrev_b32 v25, 1, v25")
    a.i("v_lshl_add_u32 v25, v4, 5, v25")
    a.i("v_sub_u32 v26, 40, v25")
    a.i("v_lshlrev_b32 v26, 2, v26")
    a.i("v_and_b32 v27, 1, v3")
    a.i("v_xor_b32 v27, 1, v27")
    a.i("v_lshl_add_u32 v26, v27, 1, v26")
    a.i(f"s_add_u32 s14, s9, {ZC_OFF}")
    a.i("v_add_u32 v26, s14, v26")
    a.i("v_cmp_gt_u32 vcc, 32, v2")
    a.i("s_and_saveexec_b64 s[6:7], vcc")
    for r in (3, 2, 1): a.i(f"ds_write_b16 v26, v{32+r} offset:{(3-r)*32}")
    a.i("v_cmp_lt_u32 vcc, 0, v2")
    a.i("s_and_b64 exec, exec, vcc")
    a.i("ds_write_b16 v26, v32 offset:96")
    a.i("s_mov_b64 exec, s[6:7]")
    a.i(f"v_mov_b32 v26, {ZB_OFF + 16*4}")
    a.i(f"v_mov_b32 v27, {ZC_OFF + 2}")
    a.i("v_cmp_eq_u32 vcc, 32, v2")
    a.i("v_cndmask_b32 v26, v26, v27, vcc")
    a.i("v_cndmask_b32 v33, v32, v145, vcc")
    a.i("v_add_u32 v26, s9, v26")
    a.i("v_and_b32 v27, 31, v2")
    a.i("v_cmp_eq_u32 vcc, 0, v27")
    a.i("s_and_saveexec_b64 s[6:7], vcc")
    a.i("ds_write_b16 v26, v33")
    a.i("s_mov_b64 exec, s[6:7]")
    a.i("v_readlane_b32 s5, v32, 0")
    a.i(f"s_add_u32 s13, s9, {P0_OFF}")
    a.i("v_add_u32 v25, s13, v7")
    for rnd in range(2):
        if rnd == 1:
            a.i("v_cmp_gt_u32 vcc, 6, v2")
            a.i("s_and_saveexec_b64 s[6:7], vcc")
        a.i(f"ds_read_b128 v[36:39], v25 offset:{rnd*1024}")
        a.i(f"ds_read_b32 v40, v25 offset:{rnd*1024+16}")
        a.i("s_waitcnt lgkmcnt(0)")
        for i in range(4): a.i(f"v_alignbit_b32 v{44+i}, v{37+i}, v{36+i}, 16")
        a.i(f"ds_write_b128 v25, v[44:47] offset:{rnd*1024 + P1_OFF - P0_OFF}")
        if rnd == 1: a.i("s_mov_b64 exec, s[6:7]")
    S.stamp()
    if "dumpk" in opts:
        SK = 48
        srd(a, SK, P_WS, AT_OFF, AT_SZ)
        a.i("s_waitcnt lgkmcnt(0)")
        a.i("v_add_u32 v24, s15, v7")
        for j in range(4):
            a.i(f"ds_read_b128 v[36:39], v24 offset:{j*1024}")
            a.i("s_waitcnt lgkmcnt(0)")
            a.i(f"s_add_u32 s13, s12, {j*1024}")
            a.i(f"buffer_store_dwordx4 v[36:39], v7, s[{SK}:{SK+3}], s13 offen")
            a.i("s_nop 2")
        a.i("s_waitcnt vmcnt(0)")
        a.i("s_endpgm")
        return
    conv(a, S, vm, opts, st_en)

def conv(a, S, vm, opts, st_en):
    a.c("conv")
    CF = 200
    ACC = 32; AN = 64; FIX = 132; BB = 136; ZT = 152
    DW = [192, 196, 236, 240, 244, 248]; APPA, APPB, APPC = 228, 232, 252
    VB, VAN, VAN2, VZ = 8, 9, 10, 11
    a.i("v_lshlrev_b32 v12, 5, v3")
    a.i("v_lshlrev_b32 v13, 4, v4")
    a.i("v_sub_u32 v12, v13, v12")
    a.i("s_add_u32 s13, s9, 480")
    a.i(f"v_add_u32 v{VB}, s13, v12")
    a.i("v_add_u32 v12, 1, v3")
    a.i("v_lshrrev_b32 v12, 1, v12")
    a.i("v_lshl_add_u32 v12, v4, 2, v12")
    a.i("v_lshlrev_b32 v12, 2, v12")
    a.i("v_and_b32 v13, 1, v3")
    a.i(f"v_mov_b32 v14, {P1_OFF}")
    a.i(f"v_mov_b32 v15, {P0_OFF}")
    a.i("v_cmp_eq_u32 vcc, 1, v13")
    a.i("v_cndmask_b32 v14, v14, v15, vcc")
    a.i("v_add_u32 v12, v12, v14")
    a.i(f"v_add_u32 v{VAN}, s9, v12")
    a.i(f"v_add_u32 v{VAN2}, 1024, v{VAN}")
    a.i("v_lshlrev_b32 v12, 2, v4")
    a.i("v_sub_u32 v12, v12, v3")
    a.i("v_add_u32 v12, 15, v12")
    a.i("v_lshlrev_b32 v12, 2, v12")
    a.i(f"s_add_u32 s13, s9, {ZA_OFF}")
    a.i(f"v_add_u32 v{VZ}, s13, v12")
    zt = {}
    k = 0
    for name, base, deltas, top in (("A", 0, (2,3,4), 4), ("B", 64, (2,3,4), 4), ("C", 128, (4,5,6,7), 7)):
        for dl in deltas:
            r = ZT + 4*k; k += 1; zt[(name, dl)] = r
            o = base + 16*(top - dl)
            a.i(f"ds_read2_b32 v[{r}:{r+1}], v{VZ} offset0:{o} offset1:{o+1}")
            a.i(f"ds_read2_b32 v[{r+2}:{r+3}], v{VZ} offset0:{o+2} offset1:{o+3}")
    vm.wait("cf")
    if "fine" not in opts: S.stamp()
    for i in range(4): a.i(f"v_and_b32 v{FIX+i}, s5, v{CF+24+i}")
    inited = set()
    def accm(J, A, B):
        d = ACC + 4*J
        C = f"v[{d}:{d+3}]" if J in inited else "0"
        inited.add(J)
        a.i(f"v_mfma_f32_16x16x32_bf16 v[{d}:{d+3}], v[{A}:{A+3}], v[{B}:{B+3}], {C}")
    def ldT(kap):
        r = BB + (kap % 2)*8
        a.i(f"ds_read_b128 v[{r}:{r+3}], v{VB} offset:{3584 - 512*kap}")
        a.i(f"ds_read_b128 v[{r+4}:{r+7}], v{VB} offset:{3600 - 512*kap}")
    def ldAN(s):
        r = AN + 4*s
        if s < 16:
            a.i(f"ds_read2_b32 v[{r}:{r+1}], v{VAN} offset0:{16*s} offset1:{16*s+1}")
            a.i(f"ds_read2_b32 v[{r+2}:{r+3}], v{VAN} offset0:{16*s+2} offset1:{16*s+3}")
        else:
            a.i(f"ds_read2_b32 v[{r}:{r+1}], v{VAN2} offset0:0 offset1:1")
            a.i(f"ds_read2_b32 v[{r+2}:{r+3}], v{VAN2} offset0:2 offset1:3")
    ldT(0); ldT(1)
    an_next = 0
    def far(kap):
        for dl in (2, 3, 4):
            if kap + dl <= 7:
                accm(kap + dl, APPA, zt[("A", dl)])
                accm(kap + dl, APPB, zt[("B", dl)])
        if kap <= 3:
            for dl in (4, 5, 6, 7):
                if kap + dl <= 7: accm(kap + dl, APPC, zt[("C", dl)])
    for kap in range(6):
        Ta = BB + (kap % 2)*8; Tb = Ta + 4
        a.i("s_waitcnt lgkmcnt(2)" if kap == 0 else f"s_waitcnt lgkmcnt({pend})")
        w = lambda D, T, c: a.i(f"v_mfma_f32_16x16x32_bf16 v[{D}:{D+3}], v[{T}:{T+3}], v[{CF+4*c}:{CF+4*c+3}], 0")
        w(DW[0], Ta, 0); w(DW[1], Ta, 1); w(DW[2], Tb, 3); w(DW[3], Tb, 4)
        if kap <= 3: w(DW[4], Ta, 2); w(DW[5], Tb, 5)
        if kap <= 3: accm(kap + 4, FIX, Ta)
        pend = 0
        for _ in range(3):
            if an_next < 17: ldAN(an_next); an_next += 1; pend += 2
        if kap + 2 < 6: ldT(kap + 2); pend = 2
        else: pend = 0
        if kap > 0: far(kap - 1)
        for j in range(4): a.i(f"v_cvt_pk_bf16_f32 v{APPA+j}, v{DW[0]+j}, v{DW[1]+j}")
        for j in range(4): a.i(f"v_cvt_pk_bf16_f32 v{APPB+j}, v{DW[2]+j}, v{DW[3]+j}")
        if kap <= 3:
            for j in range(4): a.i(f"v_cvt_pk_bf16_f32 v{APPC+j}, v{DW[4]+j}, v{DW[5]+j}")
    far(5)
    while an_next < 17: ldAN(an_next); an_next += 1
    if "fine" not in opts: S.stamp()
    SAT = 48; SDB = 52
    srd(a, SAT, P_WS, AT_OFF, AT_SZ)
    srd(a, SDB, P_WS, FL_OFF, FL_SZ)
    a.i("v_lshlrev_b32 v12, 5, v3")
    a.i("v_lshrrev_b32 v13, 1, v4")
    a.i("v_lshl_add_u32 v12, v13, 4, v12")
    a.i("v_and_b32 v13, 1, v4")
    a.i("v_lshl_add_u32 v12, v13, 9, v12")
    def store_pair(Jh, Jl):
        dl = ACC + 4*Jl; dh = ACC + 4*Jh
        r = ZT + 4*(Jl // 2)
        a.i(f"v_cvt_pk_bf16_f32 v{r}, v{dl}, v{dl+1}")
        a.i(f"v_cvt_pk_bf16_f32 v{r+1}, v{dl+2}, v{dl+3}")
        a.i(f"v_cvt_pk_bf16_f32 v{r+2}, v{dh}, v{dh+1}")
        a.i(f"v_cvt_pk_bf16_f32 v{r+3}, v{dh+2}, v{dh+3}")
        a.i(f"v_permlane16_swap_b32 v{r}, v{r+2}")
        a.i(f"v_permlane16_swap_b32 v{r+1}, v{r+3}")
        a.i(f"buffer_store_dwordx4 v[{r}:{r+3}], v12, s[{SAT}:{SAT+3}], s12 offen offset:{512*Jl} sc1")
    taus = list(range(56, -8, -1))
    def ldB(i):
        r = BB + (i % 4)*4
        a.i(f"ds_read_b128 v[{r}:{r+3}], v{VB} offset:{64*(56 - taus[i])}")
    a.i("s_waitcnt lgkmcnt(0)")
    for i in range(3): ldB(i)
    for i, tau in enumerate(taus):
        if i + 3 < len(taus): ldB(i + 3)
        a.i(f"s_waitcnt lgkmcnt({min(3, len(taus) - 1 - i)})")
        B = BB + (i % 4)*4
        for J in range(8):
            s = 8*J - tau
            if 0 <= s <= 16: accm(J, AN + 4*s, B)
        if tau in (32, 16, 0, -7):
            Jh = {32: 7, 16: 5, 0: 3, -7: 1}[tau]
            store_pair(Jh, Jh - 1)
    S.stamp()
    a.i("s_sub_u32 s13, s2, 256")
    a.i("s_lshl_b32 s13, s13, 7")
    a.i("v_mov_b32 v13, s13")
    a.i("v_mov_b32 v14, 1")
    a.i("s_waitcnt vmcnt(0)")
    if "atim" in opts: S.stamp()
    a.i("s_barrier")
    lns = a.newlabel("SNS")
    a.i("s_cmp_lg_u32 s8, 0")
    a.i(f"s_cbranch_scc1 {lns}")
    a.i("v_cmp_eq_u32 vcc, 0, v2")
    a.i("s_and_saveexec_b64 s[6:7], vcc")
    a.i(f"buffer_store_dword v14, v13, s[{SDB}:{SDB+3}], 0 offen sc1")
    a.i("s_mov_b64 exec, s[6:7]")
    a.label(lns)
    S.stamp(); S.real()
    S.write(1, vt=14, srd=56)
    a.i("s_endpgm")
```

```python
from common import *

def gen_t(a, opts=(), st_en=False):
    a.c("==== T role ====")
    S = Stamps(a, st_en, base=84)
    S.real(); S.stamp()
    a.i("s_sub_u32 s4, s2, 224")
    a.i("v_lshrrev_b32 v1, 6, v0")
    a.i("v_and_b32 v2, 63, v0")
    a.i("v_readfirstlane_b32 s8, v1")
    a.i("s_waitcnt lgkmcnt(0)")
    SW2, SP, SU, SUT, SCF = 48, 52, 56, 60, 64
    srd(a, SW2, P_W2, 0, 1728*1280)
    srd(a, SP, P_WS, W2P_OFF, W2P_SZ)
    srd(a, SU, P_U, 0, 2048*1280)
    srd(a, SUT, P_WS, UT_OFF, UT_SZ)
    srd(a, SCF, P_WS, CF_OFF, CF_SZ)
    a.i("s_lshl_b32 s5, s4, 3")
    a.i("s_add_u32 s5, s5, s8")
    a.i("v_lshrrev_b32 v3, 3, v2")
    a.i("v_mul_u32_u24 v3, 1280, v3")
    a.i("v_and_b32 v4, 7, v2")
    a.i("v_lshl_add_u32 v10, v4, 4, v3")
    a.i("s_mul_i32 s9, s8, 20480")
    vm = VM(a)
    for i in range(3):
        a.i(f"s_add_u32 s10, s5, {256*i}")
        a.i("s_min_u32 s10, s10, 539")
        a.i("s_mul_i32 s11, s10, 52429")
        a.i(f"s_lshr_b32 s{72+2*i}, s11, 19")
        a.i(f"s_mul_i32 s11, s{72+2*i}, 10")
        a.i(f"s_sub_u32 s{73+2*i}, s10, s11")
        a.i(f"s_mul_i32 s12, s{72+2*i}, 40960")
        a.i(f"s_lshl_b32 s13, s{73+2*i}, 7")
        a.i("s_add_u32 s12, s12, s13")
        for jj in range(4):
            a.i(f"s_add_u32 m0, s9, {i*4096 + jj*1024}")
            vm.issue(f"buffer_load_dwordx4 v10, s[{SW2}:{SW2+3}], s12 offen lds", ("u", i) if jj == 3 else None)
            if jj < 3: a.i("s_add_u32 s12, s12, 10240")
    SPF = 68
    a.i("v_lshlrev_b32 v12, 4, v2")
    a.i("s_lshl_b32 s10, s5, 10")
    for k, pp in enumerate((P_LAR, P_AIM, P_CR, P_CI)):
        srd(a, SPF, pp, 0, 163840)
        vm.issue(f"buffer_load_dwordx4 v[{100+4*k}:{103+4*k}], v12, s[{SPF}:{SPF+3}], s10 offen")
    srd(a, SPF, P_WS, FL_OFF, FL_SZ)
    a.i("v_lshlrev_b32 v13, 2, v2")
    a.i("v_min_u32 v13, 124, v13")
    a.i("v_mov_b32 v14, 0")
    a.i("s_lshl_b32 s10, s5, 7")
    vm.issue(f"buffer_store_dword v14, v13, s[{SPF}:{SPF+3}], s10 offen sc1")
    lcf = a.newlabel("TCF")
    a.i("s_cmp_lg_u32 s5, 0")
    a.i(f"s_cbranch_scc1 {lcf}")
    a.i("v_and_b32 v3, 15, v2")
    a.i("v_lshrrev_b32 v4, 4, v2")
    a.i("v_lshl_add_u32 v3, v4, 3, v3")
    a.i("v_lshlrev_b32 v12, 4, v2")
    a.i("v_mov_b32 v13, 0")
    specs = [(-15, 8, 2), (-15, 12, 1), (-15, 8, 3), (-7, 16, 2), (-7, 20, 1), (-7, 16, 4), None]
    for f, sp in enumerate(specs):
        if sp: off, width, val = sp[0] - sp[1] + sp[2], 2*sp[2]+1, 0x3F80
        else: off, width, val = -18, 2, 0xFFFF
        a.i(f"v_mov_b32 v14, {val:#x}")
        a.i(f"v_mov_b32 v15, {val << 16:#x}")
        for j in range(4):
            a.i(f"v_add_u32 v5, {off + 2*j}, v3")
            a.i(f"v_add_u32 v6, {off + 2*j + 1}, v3")
            a.i(f"v_cmp_gt_u32 vcc, {width}, v5")
            a.i(f"v_cndmask_b32 v7, v13, v14, vcc")
            a.i(f"v_cmp_gt_u32 vcc, {width}, v6")
            a.i(f"v_cndmask_b32 v8, v13, v15, vcc")
            a.i(f"v_or_b32 v{16+j}, v7, v8")
        a.i(f"s_mov_b32 s10, {f*1024}")
        a.i(f"buffer_store_dwordx4 v[16:19], v12, s[{SCF}:{SCF+3}], s10 offen")
        a.i("s_nop 1")
    a.label(lcf)
    vm_extra = None
    a.i("v_lshrrev_b32 v3, 4, v2")
    a.i("v_bfe_u32 v4, v2, 2, 2")
    a.i("v_and_b32 v5, 3, v2")
    a.i("v_lshl_add_u32 v6, v3, 2, v4")
    a.i("v_lshlrev_b32 v6, 7, v6")
    a.i("v_lshl_add_u32 v6, v5, 3, v6")
    a.i("v_add_u32 v11, s9, v6")
    a.i("v_lshlrev_b32 v12, 4, v2")
    for i in range(3):
        vm.wait(("u", i))
        R = 16 + (i % 2) * 16
        for tt in range(4):
            for e in range(2):
                a.i(f"ds_read_b64_tr_b16 v[{R+4*tt+2*e}:{R+4*tt+2*e+1}], v11 offset:{i*4096 + e*2048 + tt*32}")
        for tt in range(4):
            a.i(f"s_lshl_b32 s10, s{73+2*i}, 2")
            a.i(f"s_add_u32 s10, s10, {tt}")
            a.i("s_mul_i32 s11, s10, 13")
            a.i("s_lshr_b32 s11, s11, 6")
            a.i("s_mul_i32 s12, s11, 5")
            a.i("s_sub_u32 s12, s10, s12")
            a.i("s_mul_i32 s11, s11, 54")
            a.i(f"s_add_u32 s11, s11, s{72+2*i}")
            a.i("s_mul_i32 s11, s11, 5")
            a.i("s_add_u32 s11, s11, s12")
            a.i("s_lshl_b32 s11, s11, 10")
            a.i(f"s_waitcnt lgkmcnt({6-2*tt})")
            vm.issue(f"buffer_store_dwordx4 v[{R+4*tt}:{R+4*tt+3}], v12, s[{SP}:{SP+3}], s11 offen" + ("" if "nowt" in opts else " sc1"))
    S.stamp()
    if st_en: a.i("s_waitcnt vmcnt(0)")
    S.stamp(); S.real()
    S.write(0, vt=20, srd=48)
    a.i("s_endpgm")
```
